```python
import torch

def _softmax(x, axis=-1):
    return torch.softmax(x, dim=axis)
def _gelu(x):
    return torch.nn.functional.gelu(x, approximate="tanh")
def _silu(x):
    return torch.nn.functional.silu(x)
def _sigmoid(x):
    return torch.sigmoid(x)
def _layernorm(x, axis=-1, eps=1e-5):
    m = x.mean(dim=axis, keepdim=True)
    v = x.var(dim=axis, keepdim=True, unbiased=False)
    return (x - m) / torch.sqrt(v + eps)
def _scatter_add(tgt, idx, src, axis=0):
    return tgt.clone().index_add_(axis, idx, src)
def _segment_sum(src, seg, n):
    out = torch.zeros((n,) + src.shape[1:], dtype=src.dtype)
    return out.index_add_(0, seg, src)
def _pad(x, pw):
    flat = tuple(v for pair in reversed(pw) for v in pair)
    return torch.nn.functional.pad(x, flat)

kernel_name = 'gated_mix__mha_block__mixer_s_mlp__prompt'

def setup_inputs():

    _w = (lambda a: (lambda t: t.to(torch.bfloat16) if t.is_floating_point() else t)(torch.as_tensor(a)))
    def _A_setup():
        B, S, D, H = 1, 2048, 512, 32
        return {
            "x": _w((lambda *s: torch.randn(*s, dtype=torch.bfloat16) * 0.05)(B, S, D)),
            "wqkv": _w((lambda *s: torch.randn(*s, dtype=torch.bfloat16) * 1.6)(D, 3 * D)),
            "wo": _w((lambda *s: torch.randn(*s, dtype=torch.bfloat16) * 0.1)(D, D)),
        }
    _A_in = _A_setup()

    def _B_setup():
        B, S, D, F = 1, 2048, 512, 1792
        return {
            "x":  _w((lambda *s: torch.randn(*s, dtype=torch.bfloat16) * 0.05)(B, S, D)),
            "w1": _w((lambda *s: torch.randn(*s, dtype=torch.bfloat16) * 3.2)(D, D) * (D ** -0.5)),
            "w2": _w((lambda *s: torch.randn(*s, dtype=torch.bfloat16) * 3.2)(D, D) * (D ** -0.5)),
            "w3": _w((lambda *s: torch.randn(*s, dtype=torch.bfloat16) * 3.2)(D, F) * (D ** -0.5)),
            "w4": _w((lambda *s: torch.randn(*s, dtype=torch.bfloat16) * 1.6)(F, D) * (F ** -0.5)),
        }
    _B_in = _B_setup()

    return {
        "A_x": _A_in["x"],
        "A_wqkv": _A_in["wqkv"],
        "A_wo": _A_in["wo"],
        "B_x": _B_in["x"],
        "B_w1": _B_in["w1"],
        "B_w2": _B_in["w2"],
        "B_w3": _B_in["w3"],
        "B_w4": _B_in["w4"],
        "gate_w": _w((lambda *s: torch.randn(*s, dtype=torch.bfloat16) * 0.05)(512) * 16.0),
    }

def reference(A_x, A_wqkv, A_wo, B_x, B_w1, B_w2, B_w3, B_w4, gate_w):
    def _A_ref(x, wqkv, wo):
        B, S, D = x.shape
        H = 32
        Dh = D // H
        qkv = (lambda x, *d: x.permute(*d))((x @ wqkv).reshape(B, S, 3, H, Dh), 2, 0, 3, 1, 4)
        q, k, v = qkv[0], qkv[1], qkv[2]
        scores = torch.einsum("bhqd,bhkd->bhqk", q, k) * (Dh ** -0.5)
        p = _softmax(scores, axis=-1)
        o = torch.einsum("bhqk,bhkd->bhqd", p, v)
        return (lambda x, *d: x.permute(*d))(o, 0, 2, 1, 3).reshape(B, S, D) @ wo

    def _B_ref(x, w1, w2, w3, w4):
        B, S, D = x.shape
        h = _gelu(_layernorm(x, axis=-1) @ w1)
        c = D // 4
        g0 = _pad(h[:, :, 0*c:1*c], ((0, 0), (1, 0), (0, 0)))[:, :S, :]
        g1 = _pad(h[:, :, 1*c:2*c], ((0, 0), (0, 1), (0, 0)))[:, 1:, :]
        g2 = _pad(h[:, :, 2*c:3*c], ((0, 0), (2, 0), (0, 0)))[:, :S, :]
        g3 = _pad(h[:, :, 3*c:   ], ((0, 0), (0, 2), (0, 0)))[:, 2:, :]
        hs = torch.concatenate([g0, g1, g2, g3], axis=-1) @ w2
        x1 = x + hs
        h2 = _gelu(_layernorm(x1, axis=-1) @ w3) @ w4
        return x1 + h2

    x = A_x
    g = _sigmoid((x * gate_w).sum(-1, keepdims=True))
    a = _A_ref(x, A_wqkv, A_wo)
    b = _B_ref(x, B_w1, B_w2, B_w3, B_w4)
    return g * a + (1 - g) * b
```

```python
import struct

def f2u(x):
    return struct.unpack("<I", struct.pack("<f", x))[0]

def hx(x):
    return "0x%x" % (x & 0xffffffff)

def fl(x):
    return hx(f2u(x))

class K:
    def __init__(self, name):
        self.name = name
        self.L = []
        self.vm = []
        self.uid = 0
    def e(self, s):
        self.L.append("    " + s)
    def c(self, s):
        self.L.append("    ; " + s)
    def label(self, l):
        self.L.append(l + ":")
    def newlabel(self, base):
        self.uid += 1
        return f"L_{self.name}_{base}_{self.uid}"
    def vmem(self, s, tag):
        self.e(s)
        self.vm.append(tag)
    def wait_vm(self, tag, extra=""):
        idx = [i for i, t in enumerate(self.vm) if t == tag]
        assert idx, tag
        n = len(self.vm) - 1 - max(idx)
        assert n <= 63, n
        self.e(f"s_waitcnt vmcnt({n}){extra}")
    def vm_count_after(self, tag):
        idx = [i for i, t in enumerate(self.vm) if t == tag]
        assert idx, tag
        return len(self.vm) - 1 - max(idx)
    def text(self):
        return "\n".join(self.L) + "\n"

def vr(b, n):
    return f"v[{b}:{b+n-1}]" if n > 1 else f"v{b}"

def sr(b, n):
    return f"s[{b}:{b+n-1}]" if n > 1 else f"s{b}"

def kernel_text(k, nvgpr, nsgpr=96):
    acc = (nvgpr + 3) // 4 * 4
    return f"""
.text
.globl {k.name}
.p2align 8
.type {k.name},@function
{k.name}:
{k.text()}
.section .rodata,"a"
.p2align 6
.amdhsa_kernel {k.name}
  .amdhsa_next_free_vgpr {nvgpr}
  .amdhsa_next_free_sgpr {nsgpr}
  .amdhsa_accum_offset {acc}
  .amdhsa_group_segment_fixed_size 0
  .amdhsa_kernarg_size 96
  .amdhsa_user_sgpr_count 2
  .amdhsa_user_sgpr_kernarg_segment_ptr 1
  .amdhsa_system_sgpr_workgroup_id_x 1
.end_amdhsa_kernel
"""
```

```python
from asmlib import *
from gemm import VAlloc

WS_Q, WS_K, WS_V, WS_O, WS_KN = 0x000000, 0x200000, 0x400000, 0xA00000, 0x1304000
MB2 = 0x200000
P_WS = 62

def gen_attn():
    from gen import head, tail, srd, pack8
    k = K("attn_kernel")
    e = k.e
    head(k, 256)
    NT = 64
    CH = 8
    NCH = NT // CH
    VOFF = NT * 1024
    e("s_lshl_b32 s37, s35, 2")
    e("s_lshr_b32 s38, s36, 3")
    e("s_add_u32 s70, s37, s38")
    e("s_and_b32 s71, s36, 7")
    va = VAlloc(4)
    Q = [va.a(4, 4), va.a(4, 4)]
    C = [va.a(16, 4), va.a(16, 4)]
    S = [va.a(16, 4), va.a(16, 4)]
    O = [va.a(16, 4), va.a(16, 4)]
    P = [va.a(8, 4), va.a(8, 4)]
    Kf = [va.a(4, 4), va.a(4, 4)]
    Vf = [[va.a(4, 4), va.a(4, 4)], [va.a(4, 4), va.a(4, 4)]]
    vD, vKa, vVa, vkn, t0, t1, t2, t3 = [va.a() for _ in range(8)]
    e(f"v_lshlrev_b32 v{vKa}, 4, v1")
    e(f"v_lshl_add_u32 v{vD}, v2, 11, v{vKa}")
    e("s_lshl_b32 s72, s70, 16")
    e("s_lshl_b32 s73, s34, 11")
    e("s_waitcnt lgkmcnt(0)")
    srd(k, 4, P_WS, WS_K, MB2)
    srd(k, 8, P_WS, WS_V, MB2)
    srd(k, 12, P_WS, WS_Q, MB2)
    srd(k, 16, P_WS, WS_KN, 4096)
    srd(k, 20, P_WS, WS_O, MB2)
    e("s_mov_b32 s74, s72")
    e("s_mov_b32 s75, s73")
    def dma_chunk():
        e("s_mov_b32 m0, s75")
        e("s_nop 0")
        e(f"buffer_load_dwordx4 v{vD}, s[4:7], s74 offen lds")
        e(f"buffer_load_dwordx4 v{vD}, s[4:7], s74 offen offset:1024 lds")
        e(f"s_add_u32 m0, s75, {VOFF}")
        e("s_nop 0")
        e(f"buffer_load_dwordx4 v{vD}, s[8:11], s74 offen lds")
        e(f"buffer_load_dwordx4 v{vD}, s[8:11], s74 offen offset:1024 lds")
        e(f"s_add_u32 s74, s74, {CH * 1024}")
        e(f"s_add_u32 s75, s75, {CH * 1024}")
    e("s_lshl_b32 s37, s71, 13")
    e("s_add_u32 s37, s37, s72")
    e("s_lshl_b32 s38, s34, 11")
    e("s_add_u32 s37, s37, s38")
    e(f"buffer_load_dwordx4 {vr(Q[0], 4)}, v{vKa}, s[12:15], s37 offen")
    e(f"buffer_load_dwordx4 {vr(Q[1], 4)}, v{vKa}, s[12:15], s37 offen offset:1024")
    e(f"v_and_b32 v{t0}, 31, v1")
    e(f"v_lshlrev_b32 v{t0}, 7, v{t0}")
    e("s_lshl_b32 s38, s70, 2")
    e(f"buffer_load_dword v{vkn}, v{t0}, s[16:19], s38 offen")
    dma_chunk()
    dma_chunk()
    e(f"v_lshrrev_b32 v{t0}, 5, v1")
    e(f"v_and_b32 v{t1}, 15, v1")
    e(f"v_lshlrev_b32 v{vVa}, 4, v{t1}")
    e(f"v_lshl_add_u32 v{vVa}, v{t0}, 8, v{vVa}")
    e(f"v_add_u32 v{vVa}, {VOFF}, v{vVa}")
    for b in range(2):
        for t in range(2):
            for i in range(4):
                e(f"v_mov_b32 v{Vf[b][t] + i}, 0x3f803f80")
    for i in range(8):
        e(f"v_mov_b32 v{P[1] + i}, 0")
    for q in range(2):
        for i in range(16):
            e(f"v_mov_b32 v{O[q] + i}, 0")
    e("s_mov_b32 s76, 0xffff")
    e("s_mov_b32 s77, 0xffff")
    e("s_waitcnt vmcnt(8)")
    for q, n in ((0, t0), (1, t1)):
        e(f"v_mov_b32 v{n}, 0")
    for i in range(4):
        for q, n in ((0, t0), (1, t1)):
            e(f"v_dot2c_f32_bf16 v{n}, v{Q[q] + i}, v{Q[q] + i}")
    for dpp in ("row_shr:1 row_mask:0xf bank_mask:0xf", "row_shr:2 row_mask:0xf bank_mask:0xf",
                "row_shr:4 row_mask:0xf bank_mask:0xf", "row_shr:8 row_mask:0xf bank_mask:0xf",
                "row_bcast:15 row_mask:0xa bank_mask:0xf", "row_bcast:31 row_mask:0xc bank_mask:0xf"):
        e("s_nop 1")
        e(f"v_max_f32_dpp v{vkn}, v{vkn}, v{vkn} {dpp}")
    e(f"v_mov_b32 v{t2}, v{t0}")
    e(f"v_mov_b32 v{t3}, v{t1}")
    e("s_nop 1")
    e(f"v_readlane_b32 s78, v{vkn}, 63")
    e(f"v_permlane32_swap_b32 v{t0}, v{t2}")
    e(f"v_permlane32_swap_b32 v{t1}, v{t3}")
    e("s_nop 1")
    e(f"v_add_f32 v{t0}, v{t0}, v{t2}")
    e(f"v_add_f32 v{t1}, v{t1}, v{t3}")
    e(f"v_mul_f32 v{t0}, s78, v{t0}")
    e(f"v_mul_f32 v{t1}, s78, v{t1}")
    e(f"v_sqrt_f32 v{t0}, v{t0}")
    e(f"v_sqrt_f32 v{t1}, v{t1}")
    e("s_nop 0")
    e(f"v_mul_f32 v{t0}, {fl(-1.01)}, v{t0}")
    e(f"v_mul_f32 v{t1}, {fl(-1.01)}, v{t1}")
    for q, n in ((0, t0), (1, t1)):
        for i in range(16):
            e(f"v_mov_b32 v{C[q] + i}, v{n}")
    e("s_waitcnt vmcnt(0)")
    e("s_barrier")
    dma_chunk()
    e(f"ds_read_b128 {vr(Kf[0], 4)}, v{vKa}")
    e("s_waitcnt lgkmcnt(0)")
    e(f"v_mfma_f32_32x32x16_bf16 {vr(S[0], 16)}, {vr(Kf[0], 4)}, {vr(Q[0], 4)}, {vr(C[0], 16)}")
    e(f"s_mov_b32 s79, 0")
    e("s_nop 7")
    e("s_nop 3")
    k.label("L_attn_loop")
    for u in range(2 * CH):
        j, qt = divmod(u, 2)
        if qt == 0:
            e(f"ds_read_b128 {vr(Kf[(j + 1) % 2], 4)}, v{vKa} offset:{(j + 1) * 1024}")
            e("s_mov_b64 exec, s[76:77]")
            e(f"ds_read_b128 {vr(Vf[j % 2][0], 4)}, v{vVa} offset:{j * 1024}")
            e(f"ds_read_b128 {vr(Vf[j % 2][1], 4)}, v{vVa} offset:{j * 1024 + 512}")
            e("s_mov_b64 exec, -1")
            qk = f"v_mfma_f32_32x32x16_bf16 {vr(S[1], 16)}, {vr(Kf[j % 2], 4)}, {vr(Q[1], 4)}, {vr(C[1], 16)}"
            pv = [f"v_mfma_f32_32x32x16_bf16 {vr(O[1], 16)}, {vr(Vf[(j - 1) % 2][t], 4)}, {vr(P[1] + 4 * t, 4)}, {vr(O[1], 16)}" for t in range(2)]
        else:
            qk = f"v_mfma_f32_32x32x16_bf16 {vr(S[0], 16)}, {vr(Kf[(j + 1) % 2], 4)}, {vr(Q[0], 4)}, {vr(C[0], 16)}"
            pv = [f"v_mfma_f32_32x32x16_bf16 {vr(O[0], 16)}, {vr(Vf[j % 2][t], 4)}, {vr(P[0] + 4 * t, 4)}, {vr(O[0], 16)}" for t in range(2)]
        s, p = S[qt], P[qt]
        for i in range(16):
            e(f"v_exp_f32 v{s + i}, v{s + i}")
            if i >= 2 and i % 2 == 0:
                e(f"v_cvt_pk_bf16_f32 v{p + i // 2 - 1}, v{s + i - 2}, v{s + i - 1}")
            if i == 2:
                if qt == 1:
                    e("s_waitcnt lgkmcnt(0)")
                e(qk)
            if i == 9:
                e(pv[0])
        e(pv[1])
        e(f"v_cvt_pk_bf16_f32 v{p + 7}, v{s + 14}, v{s + 15}")
    e(f"v_add_u32 v{vKa}, {CH * 1024}, v{vKa}")
    e(f"v_add_u32 v{vVa}, {CH * 1024}, v{vVa}")
    e("s_waitcnt vmcnt(0)")
    e("s_barrier")
    e(f"s_cmp_ge_u32 s79, {NCH - 3}")
    e("s_cbranch_scc1 L_attn_nodma")
    dma_chunk()
    k.label("L_attn_nodma")
    e("s_add_u32 s79, s79, 1")
    e(f"s_cmp_lt_u32 s79, {NCH}")
    e("s_cbranch_scc1 L_attn_loop")
    for t in range(2):
        e(f"v_mfma_f32_32x32x16_bf16 {vr(O[1], 16)}, {vr(Vf[1][t], 4)}, {vr(P[1] + 4 * t, 4)}, {vr(O[1], 16)}")
    e("s_lshl_b32 s37, s71, 8")
    e("s_lshl_b32 s38, s34, 6")
    e("s_add_u32 s37, s37, s38")
    e(f"v_and_b32 v{t0}, 31, v1")
    e(f"v_add_u32 v{t0}, s37, v{t0}")
    e(f"v_lshlrev_b32 v{vD}, 10, v{t0}")
    e(f"v_lshrrev_b32 v{t0}, 5, v1")
    e(f"v_lshl_add_u32 v{vD}, v{t0}, 4, v{vD}")
    e("s_lshl_b32 s38, s70, 5")
    e(f"s_add_u32 s39, s38, {32 * 1024}")
    e(f"v_mov_b32 v{t1}, {fl(2.0 ** -64)}")
    e("s_nop 3")
    e(f"v_min_f32 v{t0}, v{O[0] + 8}, v{O[1] + 8}")
    e(f"v_cmp_ngt_f32 vcc, v{t0}, v{t1}")
    e("s_cbranch_vccnz L_attn_slow")
    k.label("L_attn_fin")
    for q in range(2):
        e(f"v_rcp_f32 v{t0 + q}, v{O[q] + 8}")
    e("s_nop 0")
    for q in range(2):
        for i in range(8):
            e(f"v_mul_f32 v{O[q] + i}, v{O[q] + i}, v{t0 + q}")
        pack8(k, O[q], P[q])
        e(f"buffer_store_dwordx4 {vr(P[q], 4)}, v{vD}, s[20:23], s{38 + q} offen")
    e(f"s_branch L_{k.name}_end")
    k.label("L_attn_slow")
    e(f"v_lshlrev_b32 v{vKa}, 4, v1")
    e(f"v_mov_b32 v{t0}, {fl(-3.0e38)}")
    e(f"v_mov_b32 v{t1}, {fl(-3.0e38)}")
    e("s_mov_b32 s79, 0")
    k.label("L_attn_slow_max")
    e(f"ds_read_b128 {vr(Kf[0], 4)}, v{vKa}")
    e("s_waitcnt lgkmcnt(0)")
    for q in range(2):
        e(f"v_mfma_f32_32x32x16_bf16 {vr(S[q], 16)}, {vr(Kf[0], 4)}, {vr(Q[q], 4)}, 0")
    e(f"v_add_u32 v{vKa}, 1024, v{vKa}")
    e("s_nop 15")
    for q in range(2):
        for i in range(0, 16, 2):
            e(f"v_max3_f32 v{t0 + q}, v{S[q] + i}, v{S[q] + i + 1}, v{t0 + q}")
    e("s_add_u32 s79, s79, 1")
    e(f"s_cmp_lt_u32 s79, {NT}")
    e("s_cbranch_scc1 L_attn_slow_max")
    e(f"v_mov_b32 v{t2}, v{t0}")
    e(f"v_mov_b32 v{t3}, v{t1}")
    e("s_nop 1")
    e(f"v_permlane32_swap_b32 v{t0}, v{t2}")
    e(f"v_permlane32_swap_b32 v{t1}, v{t3}")
    e("s_nop 1")
    e(f"v_max_f32 v{t0}, v{t0}, v{t2}")
    e(f"v_max_f32 v{t1}, v{t1}, v{t3}")
    e(f"v_sub_f32 v{t0}, 0, v{t0}")
    e(f"v_sub_f32 v{t1}, 0, v{t1}")
    for q in range(2):
        for i in range(16):
            e(f"v_mov_b32 v{C[q] + i}, v{t0 + q}")
            e(f"v_mov_b32 v{O[q] + i}, 0")
    e(f"v_lshlrev_b32 v{vKa}, 4, v1")
    e(f"v_subrev_u32 v{vVa}, {NT * 1024}, v{vVa}")
    e("s_mov_b32 s79, 0")
    k.label("L_attn_slow_loop")
    e(f"ds_read_b128 {vr(Kf[0], 4)}, v{vKa}")
    e("s_mov_b64 exec, s[76:77]")
    e(f"ds_read_b128 {vr(Vf[0][0], 4)}, v{vVa}")
    e(f"ds_read_b128 {vr(Vf[0][1], 4)}, v{vVa} offset:512")
    e("s_mov_b64 exec, -1")
    e("s_waitcnt lgkmcnt(0)")
    for q in range(2):
        e(f"v_mfma_f32_32x32x16_bf16 {vr(S[q], 16)}, {vr(Kf[0], 4)}, {vr(Q[q], 4)}, {vr(C[q], 16)}")
    e(f"v_add_u32 v{vKa}, 1024, v{vKa}")
    e(f"v_add_u32 v{vVa}, 1024, v{vVa}")
    e("s_nop 15")
    for q in range(2):
        for i in range(16):
            e(f"v_exp_f32 v{S[q] + i}, v{S[q] + i}")
        e("s_nop 0")
        pack8(k, S[q], P[q])
        pack8(k, S[q] + 8, P[q] + 4)
    e("s_nop 1")
    for q in range(2):
        for t in range(2):
            e(f"v_mfma_f32_32x32x16_bf16 {vr(O[q], 16)}, {vr(Vf[0][t], 4)}, {vr(P[q] + 4 * t, 4)}, {vr(O[q], 16)}")
    e("s_add_u32 s79, s79, 1")
    e(f"s_cmp_lt_u32 s79, {NT}")
    e("s_cbranch_scc1 L_attn_slow_loop")
    e("s_nop 15")
    e("s_branch L_attn_fin")
    tail(k)
    return k, va.n, 2 * NT * 1024
```

```python
from asmlib import *

class VAlloc:
    def __init__(self, start=0):
        self.n = start
    def a(self, cnt=1, align=1):
        self.n = (self.n + align - 1) // align * align
        b = self.n
        self.n += cnt
        return b

class Seg:
    def __init__(self, K, srdA, lda, srdB, ldb, a0=0, b0=0, shift=0, acc=0, Akey=None, Bkey=None):
        self.K, self.srdA, self.lda, self.srdB, self.ldb = K, srdA, lda, srdB, ldb
        self.a0, self.b0, self.shift, self.acc = a0, b0, shift, acc
        self.Akey = Akey if Akey is not None else (srdA, lda, shift)
        self.Bkey = Bkey if Bkey is not None else (srdB, ldb)

class Gemm:
    def __init__(self, k, va, TM, TN, WM, WN, NS, SUB, segs, perm, swapped, lds_base=0,
                 xorroles=False, wave_v=None, lane_v=None, s_row0=None, s_col0=None, s_wave=None, stmp=None):
        self.k, self.va = k, va
        self.TM, self.TN, self.WM, self.WN, self.NS, self.SUB = TM, TN, WM, WN, NS, SUB
        self.NW = WM * WN
        self.MI = TM // WM // 32
        self.NI = TN // WN // 32
        self.segs, self.perm, self.swapped = segs, perm, swapped
        self.lds_base = lds_base
        self.xor = xorroles
        self.wave_v, self.lane_v = wave_v, lane_v
        self.s_row0, self.s_col0, self.s_wave, self.st = s_row0, s_col0, s_wave, stmp
        self.rowB = TN * 2
        self.Ab = TM * 128
        self.Bb = 64 * self.rowB
        self.subsz = self.Ab + self.Bb
        self.slot = self.subsz * SUB
        self.nA = TM // 8 // self.NW
        self.nB = TN // 8 // self.NW
        self.RPI = 1024 // self.rowB
        self.CPR = self.rowB // 16
        subs = []
        for si, s in enumerate(segs):
            assert s.K % 64 == 0
            for ko in range(0, s.K, 64):
                subs.append((si, ko))
        assert len(subs) % SUB == 0
        self.stages = [subs[i:i + SUB] for i in range(0, len(subs), SUB)]
        self.nacc = max(s.acc for s in segs) + 1
        self.lds_bytes = self.slot * NS
        self.nwin = (lds_base + self.lds_bytes + 65535) // 65536
        self.win0 = lds_base // 65536

    def alloc(self):
        va = self.va
        self.acc = [[[va.a(16, 4) for _ in range(self.NI)] for _ in range(self.MI)] for _ in range(self.nacc)]
        self.X = [[va.a(4, 4) for _ in range(self.MI)] for _ in range(2)]
        self.W = [[va.a(4, 4) for _ in range(self.NI)] for _ in range(2)]
        self.vA = {}
        self.vB = {}
        for s in self.segs:
            if s.Akey not in self.vA:
                self.vA[s.Akey] = (s, [va.a() for _ in range(self.nA)])
            if s.Bkey not in self.vB:
                self.vB[s.Bkey] = (s, [va.a() for _ in range(self.nB)])
        nmi = self.MI if self.xor else 1
        self.aA = {(w, ks, mi): va.a() for w in range(self.win0, self.nwin) for ks in range(4) for mi in range(nmi)}
        self.aB = {(w, ni): va.a() for w in range(self.win0, self.nwin) for ni in range(self.NI)}
        self.t = [va.a() for _ in range(6)]
        self.s_wA = self.st + 0
        self.s_wB = self.st + 1
        self.s_oA = self.st + 2
        self.s_oB = self.st + 3

    def setup_dma(self):
        k, t = self.k, self.t
        L, Wv = self.lane_v, self.wave_v
        e = k.e
        e(f"s_mul_i32 s{self.s_wA}, s{self.s_wave}, {self.nA * 1024}")
        e(f"s_mul_i32 s{self.s_wB}, s{self.s_wave}, {self.nB * 1024}")
        e(f"s_add_u32 s{self.s_wB}, s{self.s_wB}, {self.Ab}")
        e(f"v_lshrrev_b32 v{t[0]}, 3, v{L}")
        e(f"v_mul_u32_u24 v{t[1]}, {self.nA * 8}, v{Wv}")
        e(f"v_add3_u32 v{t[0]}, v{t[0]}, v{t[1]}, s{self.s_row0}")
        e(f"v_lshrrev_b32 v{t[1]}, 4, v{L}")
        e(f"v_and_b32 v{t[2]}, 7, v{L}")
        e(f"v_xor_b32 v{t[3]}, v{t[2]}, v{t[1]}")
        e(f"v_xor_b32 v{t[4]}, 4, v{t[3]}")
        e(f"v_lshlrev_b32 v{t[3]}, 4, v{t[3]}")
        e(f"v_lshlrev_b32 v{t[4]}, 4, v{t[4]}")
        for key, (s, regs) in self.vA.items():
            e(f"s_mov_b32 s{self.s_oA}, {s.lda}")
            e(f"v_mul_lo_u32 v{t[5]}, v{t[0]}, s{self.s_oA}")
            for j, r in enumerate(regs):
                c = (8 * j + s.shift) * s.lda
                e(f"v_add_u32 v{r}, v{t[5]}, v{t[3 + (j & 1)]}")
                if c:
                    e(f"v_add_u32 v{r}, {hx(c)}, v{r}")
        sh = {16: 4, 8: 3}[self.CPR]
        e(f"v_lshrrev_b32 v{t[0]}, {sh}, v{L}")
        e(f"v_mul_u32_u24 v{t[1]}, {self.nB * self.RPI}, v{Wv}")
        e(f"v_add_u32 v{t[0]}, v{t[0]}, v{t[1]}")
        e(f"v_and_b32 v{t[2]}, {self.CPR - 1}, v{L}")
        e(f"v_lshrrev_b32 v{t[1]}, 4, v{L}")
        if self.CPR == 8:
            e(f"v_and_b32 v{t[1]}, 1, v{t[1]}")
        e(f"v_lshlrev_b32 v{t[1]}, 2, v{t[1]}")
        e(f"v_xor_b32 v{t[2]}, v{t[2]}, v{t[1]}")
        e(f"v_lshlrev_b32 v{t[2]}, 4, v{t[2]}")
        e(f"s_lshl_b32 s{self.s_oA}, s{self.s_col0}, 1")
        e(f"v_add_u32 v{t[2]}, s{self.s_oA}, v{t[2]}")
        for key, (s, regs) in self.vB.items():
            e(f"s_mov_b32 s{self.s_oA}, {s.ldb}")
            e(f"v_mul_lo_u32 v{t[5]}, v{t[0]}, s{self.s_oA}")
            for j, r in enumerate(regs):
                e(f"v_add_u32 v{r}, v{t[5]}, v{t[2]}")
                c = j * self.RPI * s.ldb
                if c:
                    e(f"v_add_u32 v{r}, {hx(c)}, v{r}")

    def setup_reads(self):
        k, t = self.k, self.t
        L, Wv = self.lane_v, self.wave_v
        e = k.e
        lg = {1: 0, 2: 1, 4: 2}[self.WN]
        e(f"v_lshrrev_b32 v{t[0]}, {lg}, v{Wv}")
        e(f"v_and_b32 v{t[1]}, {self.WN - 1}, v{Wv}")
        e(f"v_and_b32 v{t[2]}, 31, v{L}")
        e(f"v_lshrrev_b32 v{t[3]}, 5, v{L}")
        e(f"v_mul_u32_u24 v{t[4]}, {self.TM // self.WM * 128}, v{t[0]}")
        e(f"v_lshl_add_u32 v{t[4]}, v{t[2]}, 7, v{t[4]}")
        e(f"v_bfe_u32 v{t[5]}, v{L}, 1, 3")
        e(f"v_xor_b32 v{t[5]}, v{t[5]}, v{t[3]}")
        nmi = self.MI if self.xor else 1
        for ks in range(4):
            for mi in range(nmi):
                r = self.aA[(self.win0, ks, mi)]
                e(f"v_xor_b32 v{r}, {2 * ks}, v{t[5]}")
                e(f"v_lshl_add_u32 v{r}, v{r}, 4, v{t[4]}")
                if self.xor:
                    e(f"v_xor_b32 v{t[2]}, {mi}, v{t[1]}")
                    e(f"v_lshl_add_u32 v{r}, v{t[2]}, 12, v{r}")
                if self.win0:
                    e(f"v_add_u32 v{r}, {hx(self.win0 * 65536)}, v{r}")
                for w in range(self.win0 + 1, self.nwin):
                    e(f"v_add_u32 v{self.aA[(w, ks, mi)]}, {hx((w - self.win0) * 65536)}, v{r}")
        e(f"v_bfe_u32 v{t[2]}, v{L}, 2, 2")
        e(f"v_lshl_add_u32 v{t[4]}, v{t[3]}, {2 if self.perm else 3}, v{t[2]}")
        e(f"v_mul_u32_u24 v{t[4]}, {self.rowB}, v{t[4]}")
        e(f"v_and_b32 v{t[5]}, 1, v{L}")
        e(f"v_lshl_add_u32 v{t[4]}, v{t[5]}, 3, v{t[4]}")
        if self.CPR == 8:
            e(f"v_lshrrev_b32 v{t[2]}, 1, v{t[2]}")
        e(f"v_lshlrev_b32 v{t[2]}, 2, v{t[2]}")
        e(f"v_bfe_u32 v{t[5]}, v{L}, 4, 1")
        e(f"v_lshlrev_b32 v{t[5]}, 1, v{t[5]}")
        e(f"v_bfe_u32 v{t[3]}, v{L}, 1, 1")
        e(f"v_add_u32 v{t[5]}, v{t[5]}, v{t[3]}")
        e(f"v_mul_u32_u24 v{t[3]}, {self.TN // self.WN // 8}, v{t[1]}")
        e(f"v_add_u32 v{t[5]}, v{t[5]}, v{t[3]}")
        for ni in range(self.NI):
            r = self.aB[(self.win0, ni)]
            if self.xor:
                e(f"v_xor_b32 v{t[3]}, {ni}, v{t[0]}")
                e(f"v_lshl_add_u32 v{r}, v{t[3]}, 2, v{t[5]}")
            else:
                e(f"v_add_u32 v{r}, {4 * ni}, v{t[5]}")
            e(f"v_xor_b32 v{r}, v{r}, v{t[2]}")
            e(f"v_lshl_add_u32 v{r}, v{r}, 4, v{t[4]}")
            if self.win0:
                e(f"v_add_u32 v{r}, {hx(self.win0 * 65536)}, v{r}")
            for w in range(self.win0 + 1, self.nwin):
                e(f"v_add_u32 v{self.aB[(w, ni)]}, {hx((w - self.win0) * 65536)}, v{r}")

    def dma_ops(self, st):
        ops = []
        base = self.lds_base + (st % self.NS) * self.slot
        for u, (si, ko) in enumerate(self.stages[st]):
            s = self.segs[si]
            sb = base + u * self.subsz
            oa = s.a0 + ko * 2
            ob = (s.b0 + ko) * s.ldb
            for j, r in enumerate(self.vA[s.Akey][1]):
                pre = []
                if j == 0:
                    pre.append(f"s_mov_b32 s{self.s_oA}, {hx(oa)}")
                pre.append(f"s_add_u32 m0, s{self.s_wA}, {hx(sb + j * 1024)}")
                pre.append("s_nop 0")
                ops.append((pre, f"buffer_load_dwordx4 v{r}, {sr(s.srdA, 4)}, s{self.s_oA} offen lds"))
            for j, r in enumerate(self.vB[s.Bkey][1]):
                pre = []
                if j == 0:
                    pre.append(f"s_mov_b32 s{self.s_oB}, {hx(ob)}")
                pre.append(f"s_add_u32 m0, s{self.s_wB}, {hx(sb + j * 1024)}")
                pre.append("s_nop 0")
                ops.append((pre, f"buffer_load_dwordx4 v{r}, {sr(s.srdB, 4)}, s{self.s_oB} offen lds"))
        return ops

    def emit_dma(self, st):
        for pre, ins in self.dma_ops(st):
            for p in pre:
                self.k.e(p)
            self.k.vmem(ins, ("dma", id(self), st))

    def reads(self, st, step, buf):
        e = self.k.e
        u, ks = divmod(step, 4)
        sb = self.lds_base + (st % self.NS) * self.slot + u * self.subsz
        n = 0
        for mi in range(self.MI):
            off = sb + (0 if self.xor else mi * 4096)
            w = off // 65536
            r = self.aA[(w, ks, mi if self.xor else 0)]
            assert (off % 65536) + self.Ab - (0 if self.xor else mi * 4096) <= 65536
            e(f"ds_read_b128 {vr(self.X[buf][mi], 4)}, v{r} offset:{off % 65536}")
            n += 1
        for ni in range(self.NI):
            for r2 in range(2):
                off = sb + self.Ab + ks * 16 * self.rowB + r2 * (8 if self.perm else 4) * self.rowB
                w = (sb + self.Ab) // 65536
                assert ((sb + self.Ab) % 65536) + self.Bb <= 65536
                r = self.aB[(w, ni)]
                e(f"ds_read_b64_tr_b16 {vr(self.W[buf][ni] + 2 * r2, 2)}, v{r} offset:{off - w * 65536}")
                n += 1
        return n

    def mfma(self, st, step, buf, mi, ni, first):
        si, ko = self.stages[st][step // 4]
        a = self.acc[self.segs[si].acc][mi][ni]
        x, w = vr(self.X[buf][mi], 4), vr(self.W[buf][ni], 4)
        c = "0" if first else vr(a, 16)
        if self.swapped:
            return f"v_mfma_f32_32x32x16_bf16 {vr(a, 16)}, {w}, {x}, {c}"
        return f"v_mfma_f32_32x32x16_bf16 {vr(a, 16)}, {x}, {w}, {c}"

    def prologue_dma(self):
        for st in range(min(self.NS, len(self.stages))):
            self.emit_dma(st)

    def run(self, extra=None, extra_reads=None):
        k = self.k
        nst = len(self.stages)
        spS = 4 * self.SUB
        seen = set()
        k.wait_vm(("dma", id(self), 0))
        k.e("s_barrier")
        g = 0
        nr = self.reads(0, 0, 0)
        if extra_reads:
            nr += extra_reads(0, 0)
        for st in range(nst):
            for step in range(spS):
                buf = g & 1
                last = step == spS - 1
                fill = []
                if not last:
                    nr = self.reads(st, step + 1, buf ^ 1)
                    if extra_reads:
                        nr += extra_reads(g + 1, buf ^ 1)
                    k.e(f"s_waitcnt lgkmcnt({nr})")
                elif st + 1 < nst:
                    n = k.vm_count_after(("dma", id(self), st + 1))
                    k.e(f"s_waitcnt vmcnt({n}) lgkmcnt(0)")
                    k.e("s_barrier")
                    nr = self.reads(st + 1, 0, buf ^ 1)
                    if extra_reads:
                        nr += extra_reads(g + 1, buf ^ 1)
                    if st + self.NS < nst:
                        fill = [("dma", o) for o in self.dma_ops(st + self.NS)]
                else:
                    k.e("s_waitcnt lgkmcnt(0)")
                ex = extra(st, step, buf, g) if extra else []
                fill = fill + [("valu", x) for x in ex]
                mf = []
                si, ko = self.stages[st][step // 4]
                accid = self.segs[si].acc
                first = accid not in seen
                seen.add(accid)
                for mi in range(self.MI):
                    for ni in range(self.NI):
                        mf.append(self.mfma(st, step, buf, mi, ni, first))
                per = (len(fill) + len(mf) - 1) // len(mf)
                fi = 0
                for m in mf:
                    k.e(m)
                    for _ in range(per):
                        if fi < len(fill):
                            kind, o = fill[fi]
                            fi += 1
                            if kind == "dma":
                                for p in o[0]:
                                    k.e(p)
                                k.vmem(o[1], ("dma", id(self), st + self.NS))
                            else:
                                k.e(o)
                g += 1
```

```python
import sys, math
from asmlib import *
from gemm import *

WS_Q, WS_K, WS_V = 0x000000, 0x200000, 0x400000
WS_H, WS_X1, WS_O = 0x600000, 0x800000, 0xA00000
WS_H3 = 0xC00000
WS_G = 0x1300000
WS_KN = 0x1304000
MB2 = 0x200000
H3_BYTES = 2048 * 1792 * 2

P_X, P_WQKV, P_WO, P_W1, P_W2, P_W3, P_W4, P_GATE, P_OUT, P_WS = 40, 42, 44, 48, 50, 52, 54, 56, 58, 62
LOG2E = 1.4426950408889634
QSCALE = 0.25 * LOG2E
GA1 = -2.0 * math.sqrt(2.0 / math.pi) * LOG2E
GA3 = GA1 * 0.044715

def srd(k, d, p, off, size):
    if off:
        k.e(f"s_add_u32 s{d}, s{p}, {hx(off)}")
        k.e(f"s_addc_u32 s{d+1}, s{p+1}, 0")
    else:
        k.e(f"s_mov_b32 s{d}, s{p}")
        k.e(f"s_mov_b32 s{d+1}, s{p+1}")
    k.e(f"s_mov_b32 s{d+2}, {hx(size)}")
    k.e(f"s_mov_b32 s{d+3}, 0x20000")

def head(k, nwg):
    k.e(f"s_cmp_ge_u32 s2, {nwg}")
    k.e(f"s_cbranch_scc1 L_{k.name}_end")
    k.e("s_load_dwordx16 s[40:55], s[0:1], 0")
    k.e("s_load_dwordx8 s[56:63], s[0:1], 64")
    k.e("v_and_b32 v1, 63, v0")
    k.e("v_lshrrev_b32 v2, 6, v0")
    k.e("s_nop 0")
    k.e("v_readfirstlane_b32 s34, v2")
    k.e("s_and_b32 s35, s2, 7")
    k.e("s_lshr_b32 s36, s2, 3")

def tail(k):
    k.label(f"L_{k.name}_end")
    k.e("s_endpgm")

def pack8(k, src, dst):
    for i in range(4):
        k.e(f"v_cvt_pk_bf16_f32 v{dst+i}, v{src+2*i}, v{src+2*i+1}")

def gelu_ops(y, t, cA1, cA3):
    return [
        f"v_mul_f32 v{t}, v{y}, v{y}",
        f"v_fma_f32 v{t}, v{t}, v{cA3}, v{cA1}",
        f"v_mul_f32 v{t}, v{t}, v{y}",
        f"v_exp_f32 v{t}, v{t}",
        "NOP",
        f"v_add_f32 v{t}, 1.0, v{t}",
        f"v_rcp_f32 v{t}, v{t}",
        "NOP",
        f"v_mul_f32 v{y}, v{y}, v{t}",
    ]

def interleave(k, chains):
    n = max(len(c) for c in chains)
    for i in range(n):
        for c in chains:
            if i < len(c):
                if c[i] == "NOP":
                    if len(chains) < 2:
                        k.e("s_nop 0")
                    continue
                k.e(c[i])

def ln_gemm_path(k, va, srdA, lda, srdB, ldb, perm, srdO, ldo, gate, NS=4):
    g = Gemm(k, va, 128, 128, 2, 2, NS, 1, [Seg(512, srdA, lda, srdB, ldb)], perm, True,
             xorroles=True, wave_v=2, lane_v=1, s_row0=32, s_col0=33, s_wave=34, stmp=28)
    g.alloc()
    STAT = g.lds_bytes
    GWL = STAT + 2048
    s1, s2, sg, cs = va.a(), va.a(), va.a(), va.a()
    ones = va.a()
    gw = [va.a(4, 4), va.a(4, 4)] if gate else None
    vgw = va.a()
    e = k.e
    if gate:
        e(f"v_lshlrev_b32 v{vgw}, 4, v1")
        e(f"s_mov_b32 m0, {GWL}")
        e("s_nop 0")
        k.vmem(f"buffer_load_dwordx4 v{vgw}, {sr(gate['srdGW'], 4)}, 0 offen lds", ("dma", id(g), 0))
        e(f"v_lshrrev_b32 v{vgw}, 5, v1")
        e(f"v_lshlrev_b32 v{vgw}, 4, v{vgw}")
        e(f"v_add_u32 v{vgw}, {GWL}, v{vgw}")
    g.setup_dma()
    g.prologue_dma()
    g.setup_reads()
    for r in (s1, s2, sg, cs):
        e(f"v_mov_b32 v{r}, 0")
    e(f"v_mov_b32 v{ones}, 0x3f803f80")
    def extra(st, step, buf, gs):
        l = []
        x = g.X[buf][0]
        w = g.W[buf][0]
        for i in range(4):
            l.append(f"v_dot2c_f32_bf16 v{s2}, v{x+i}, v{x+i}")
            l.append(f"v_dot2c_f32_bf16 v{s1}, v{x+i}, v{ones}")
            l.append(f"v_dot2c_f32_bf16 v{cs}, v{w+i}, v{ones}")
            if gate:
                l.append(f"v_dot2c_f32_bf16 v{sg}, v{x+i}, v{gw[buf]+i}")
        return l
    def extra_reads(gs, buf):
        e(f"ds_read_b128 {vr(gw[buf], 4)}, v{vgw} offset:{gs * 32}")
        return 1
    g.run(extra, extra_reads if gate else None)
    t = g.t
    e("s_lshr_b32 s37, s34, 1")
    e("s_and_b32 s38, s34, 1")
    e("s_nop 3")
    e(f"v_permlane32_swap_b32 v{s1}, v{s2}")
    e(f"v_permlane32_swap_b32 v{sg}, v{cs}")
    e(f"v_and_b32 v{t[0]}, 31, v1")
    e(f"v_lshrrev_b32 v{t[1]}, 5, v1")
    e(f"v_add_f32 v{s1}, v{s1}, v{s2}")
    e(f"v_add_f32 v{sg}, v{sg}, v{cs}")
    e("s_lshl_b32 s39, s37, 8")
    e("s_lshl_b32 s64, s38, 7")
    e("s_add_u32 s39, s39, s64")
    e("s_lshl_b32 s64, s38, 8")
    e("s_lshl_b32 s65, s37, 7")
    e("s_add_u32 s64, s64, s65")
    e(f"v_lshlrev_b32 v{t[2]}, 2, v{t[0]}")
    e(f"v_lshl_add_u32 v{t[3]}, v{t[1]}, 9, v{t[2]}")
    e(f"v_add_u32 v{t[3]}, s39, v{t[3]}")
    e(f"ds_write_b32 v{t[3]}, v{s1} offset:{STAT}" if STAT < 65536 else f"v_add_u32 v{t[3]}, {STAT}, v{t[3]}")
    if STAT >= 65536:
        e(f"ds_write_b32 v{t[3]}, v{s1}")
    e(f"v_add_u32 v{t[4]}, s64, v{t[2]}")
    e(f"v_add_u32 v{t[4]}, {STAT + 1024}, v{t[4]}")
    e("s_mov_b32 s66, 0")
    e("s_mov_b32 s67, -1")
    e("s_mov_b64 exec, s[66:67]")
    e(f"ds_write_b32 v{t[4]}, v{sg}")
    e("s_mov_b64 exec, -1")
    if gate:
        lab = k.newlabel("nogate")
        e(f"s_cmp_lg_u32 s{gate['s_flag']}, 0")
        e(f"s_cbranch_scc1 {lab}")
        e(f"v_mul_f32 v{t[5]}, {fl(-LOG2E)}, v{sg}")
        e(f"v_exp_f32 v{t[5]}, v{t[5]}")
        e("s_lshr_b32 s65, s39, 2")
        e(f"v_add_f32 v{t[5]}, 1.0, v{t[5]}")
        e(f"v_rcp_f32 v{t[5]}, v{t[5]}")
        e("s_add_u32 s65, s65, s32")
        e("s_lshl_b32 s65, s65, 2")
        e("s_mov_b32 s66, -1")
        e("s_mov_b32 s67, 0")
        e("s_mov_b64 exec, s[66:67]")
        e(f"buffer_store_dword v{t[5]}, v{t[2]}, {sr(gate['srdG'], 4)}, s65 offen")
        e("s_mov_b64 exec, -1")
        k.label(lab)
    e("s_waitcnt lgkmcnt(0)")
    e("s_barrier")
    csr = [va.a(16, 4), va.a(16, 4)]
    mean = [va.a(), va.a()]
    rstd = [va.a(), va.a()]
    vO = [va.a(), va.a()]
    cA1, cA3 = va.a(), va.a()
    tmp = [va.a() for _ in range(4)]
    pk = [va.a(4, 4), va.a(4, 4)]
    for mi in range(2):
        e(f"s_xor_b32 s64, s38, {mi}")
        e("s_lshl_b32 s64, s64, 5")
        e("s_lshl_b32 s65, s37, 6")
        e("s_add_u32 s64, s64, s65")
        e("s_lshl_b32 s65, s64, 2")
        e(f"s_add_u32 s65, s65, {STAT}")
        e(f"v_add_u32 v{t[3]}, s65, v{t[2]}")
        e(f"ds_read_b32 v{mean[mi]}, v{t[3]}")
        e(f"ds_read_b32 v{rstd[mi]}, v{t[3]} offset:512")
        e("s_add_u32 s64, s64, s32")
        e(f"v_add_u32 v{vO[mi]}, s64, v{t[0]}")
        e(f"s_mov_b32 s65, {ldo}")
        e(f"v_mul_lo_u32 v{vO[mi]}, v{vO[mi]}, s65")
        e(f"v_lshl_add_u32 v{vO[mi]}, v{t[1]}, 4, v{vO[mi]}")
        e("s_lshl_b32 s64, s38, 6")
        e("s_add_u32 s64, s64, s33")
        e("s_lshl_b32 s64, s64, 1")
        e(f"v_add_u32 v{vO[mi]}, s64, v{vO[mi]}")
    for ni in range(2):
        e(f"s_xor_b32 s64, s37, {ni}")
        e("s_lshl_b32 s64, s64, 7")
        e("s_lshl_b32 s65, s38, 8")
        e("s_add_u32 s64, s64, s65")
        e(f"s_add_u32 s64, s64, {STAT + 1024}")
        e(f"v_lshlrev_b32 v{t[3]}, 4, v{t[1]}")
        e(f"v_add_u32 v{t[3]}, s64, v{t[3]}")
        for q in range(4):
            e(f"ds_read_b128 {vr(csr[ni] + 4 * q, 4)}, v{t[3]} offset:{q * 32}")
        e(f"s_xor_b32 s{68 + ni}, s37, {ni}")
        e(f"s_lshl_b32 s{68 + ni}, s{68 + ni}, 6")
    e(f"v_mov_b32 v{cA1}, {fl(GA1)}")
    e(f"v_mov_b32 v{cA3}, {fl(GA3)}")
    e("s_waitcnt lgkmcnt(0)")
    for mi in range(2):
        e(f"v_mul_f32 v{mean[mi]}, {fl(1.0 / 512)}, v{mean[mi]}")
        e(f"v_mul_f32 v{rstd[mi]}, {fl(1.0 / 512)}, v{rstd[mi]}")
        e(f"v_fma_f32 v{rstd[mi]}, -v{mean[mi]}, v{mean[mi]}, v{rstd[mi]}")
        e(f"v_max_f32 v{rstd[mi]}, 0, v{rstd[mi]}")
        e(f"v_add_f32 v{rstd[mi]}, {fl(1e-5)}, v{rstd[mi]}")
        e(f"v_rsq_f32 v{rstd[mi]}, v{rstd[mi]}")
    e("s_nop 0")
    cnt = 0
    for mi in range(2):
        for ni in range(2):
            a = g.acc[0][mi][ni]
            for half in range(2):
                for q4 in range(2):
                    chains = []
                    for j in range(4):
                        i = half * 8 + q4 * 4 + j
                        ch = [f"v_fma_f32 v{a+i}, -v{mean[mi]}, v{csr[ni]+i}, v{a+i}",
                              f"v_mul_f32 v{a+i}, v{a+i}, v{rstd[mi]}"] + gelu_ops(a + i, tmp[j], cA1, cA3)
                        chains.append(ch)
                    interleave(k, chains)
                p = pk[cnt & 1]
                cnt += 1
                pack8(k, a + half * 8, p)
                e(f"buffer_store_dwordx4 {vr(p, 4)}, v{vO[mi]}, {sr(srdO, 4)}, s{68 + ni} offen offset:{half * 32}")
    return GWL + 1024

def gen_g1():
    k = K("g1_kernel")
    e = k.e
    head(k, 256)
    e("s_and_b32 s37, s35, 3")
    e("s_lshl_b32 s37, s37, 2")
    e("s_and_b32 s38, s36, 3")
    e("s_add_u32 s70, s37, s38")
    e("s_lshr_b32 s37, s35, 2")
    e("s_lshl_b32 s37, s37, 3")
    e("s_lshr_b32 s38, s36, 2")
    e("s_add_u32 s71, s37, s38")
    e("s_lshl_b32 s32, s70, 7")
    e("s_and_b32 s72, s71, 3")
    e("s_lshr_b32 s73, s71, 2")
    e("s_waitcnt lgkmcnt(0)")
    srd(k, 4, P_X, 0, MB2)
    e("s_cmp_eq_u32 s73, 3")
    e(f"s_cbranch_scc1 L_g1_w1")
    srd(k, 8, P_WQKV, 0, 512 * 1536 * 2)
    e("s_lshl_b32 s33, s71, 7")
    e("s_lshl_b32 s37, s73, 21")
    e(f"s_add_u32 s12, s{P_WS}, s37")
    e(f"s_addc_u32 s13, s{P_WS+1}, 0")
    e(f"s_mov_b32 s14, {hx(MB2)}")
    e("s_mov_b32 s15, 0x20000")
    srd(k, 16, P_WS, WS_KN, 4096)
    e("s_lshr_b32 s37, s34, 1")
    e("s_and_b32 s38, s34, 1")
    e("s_lshl_b32 s74, s72, 19")
    e("s_lshl_b32 s39, s38, 18")
    e("s_add_u32 s74, s74, s39")
    e("s_lshl_b32 s39, s70, 12")
    e("s_add_u32 s74, s74, s39")
    e("s_lshl_b32 s39, s37, 11")
    e("s_add_u32 s74, s74, s39")
    e("s_cmp_eq_u32 s73, 2")
    e("s_cbranch_scc1 L_g1_v")
    maxv = 0
    lds = 0
    va = VAlloc(4)
    g = Gemm(k, va, 128, 128, 2, 2, 4, 1, [Seg(512, 4, 1024, 8, 3072)], False, True,
             wave_v=2, lane_v=1, s_row0=32, s_col0=33, s_wave=34, stmp=28)
    g.alloc()
    g.setup_dma()
    g.prologue_dma()
    g.setup_reads()
    g.run()
    lds = max(lds, g.lds_bytes)
    vS = va.a()
    pk = [va.a(4, 4), va.a(4, 4)]
    nr = va.a(8, 4)
    e(f"v_lshlrev_b32 v{vS}, 4, v1")
    e("s_nop 7")
    e("s_nop 3")
    e("s_cmp_eq_u32 s73, 1")
    e("s_cbranch_scc1 L_g1_kepi")
    cnt = 0
    for ni in range(2):
        for hf in range(2):
            e(f"s_add_u32 s75, s74, {hx((ni * 2 + hf) << 16)}")
            for mi in range(2):
                a = g.acc[0][mi][ni] + hf * 8
                for i in range(8):
                    e(f"v_mul_f32 v{a+i}, {fl(QSCALE)}, v{a+i}")
                p = pk[cnt & 1]; cnt += 1
                pack8(k, a, p)
                e(f"buffer_store_dwordx4 {vr(p, 4)}, v{vS}, s[12:15], s75 offen offset:{mi * 1024}")
    e(f"s_branch L_{k.name}_end")
    k.label("L_g1_kepi")
    for ni in range(2):
        for hf in range(2):
            e(f"s_add_u32 s75, s74, {hx((ni * 2 + hf) << 16)}")
            hh = ni * 2 + hf
            for mi in range(2):
                a = g.acc[0][mi][ni] + hf * 8
                p = pk[cnt & 1]; cnt += 1
                pack8(k, a, p)
                e(f"buffer_store_dwordx4 {vr(p, 4)}, v{vS}, s[12:15], s75 offen offset:{mi * 1024}")
                n = nr + mi * 4 + hh
                e(f"v_mul_f32 v{n}, v{a}, v{a}")
                for i in range(1, 8):
                    e(f"v_fmac_f32 v{n}, v{a+i}, v{a+i}")
    e("s_nop 1")
    for hh in range(4):
        e(f"v_permlane32_swap_b32 v{nr+hh}, v{nr+4+hh}")
    e("s_nop 1")
    for hh in range(4):
        e(f"v_add_f32 v{nr+hh}, v{nr+hh}, v{nr+4+hh}")
    for dpp in ("row_shr:1 row_mask:0xf bank_mask:0xf", "row_shr:2 row_mask:0xf bank_mask:0xf",
                "row_shr:4 row_mask:0xf bank_mask:0xf", "row_shr:8 row_mask:0xf bank_mask:0xf",
                "row_bcast:15 row_mask:0xa bank_mask:0xf", "row_bcast:31 row_mask:0xc bank_mask:0xf"):
        e("s_nop 1")
        for hh in range(4):
            e(f"v_max_f32_dpp v{nr+hh}, v{nr+hh}, v{nr+hh} {dpp}")
    e("s_lshl_b32 s75, s70, 1")
    e("s_add_u32 s75, s75, s37")
    e("s_lshl_b32 s75, s75, 7")
    e("s_lshl_b32 s39, s72, 5")
    e("s_add_u32 s75, s75, s39")
    e("s_lshl_b32 s39, s38, 4")
    e("s_add_u32 s75, s75, s39")
    e(f"v_mov_b32 v{vS}, 0")
    e("s_mov_b32 s66, 0")
    e("s_mov_b32 s67, 0x80000000")
    e("s_mov_b64 exec, s[66:67]")
    e(f"buffer_store_dwordx4 {vr(nr, 4)}, v{vS}, s[16:19], s75 offen")
    e(f"s_branch L_{k.name}_end")
    maxv = max(maxv, va.n)
    k.label("L_g1_v")
    k.vm = []
    va = VAlloc(4)
    g = Gemm(k, va, 128, 128, 2, 2, 4, 1, [Seg(512, 4, 1024, 8, 3072)], False, False,
             wave_v=2, lane_v=1, s_row0=32, s_col0=33, s_wave=34, stmp=28)
    g.alloc()
    g.setup_dma()
    g.prologue_dma()
    g.setup_reads()
    g.run()
    vS = va.a()
    tt = va.a()
    pk = [va.a(4, 4), va.a(4, 4)]
    e(f"v_bfe_u32 v{vS}, v1, 4, 1")
    e(f"v_lshlrev_b32 v{vS}, 16, v{vS}")
    e(f"v_lshrrev_b32 v{tt}, 5, v1")
    e(f"v_lshl_add_u32 v{vS}, v{tt}, 8, v{vS}")
    e(f"v_and_b32 v{tt}, 15, v1")
    e(f"v_lshl_add_u32 v{vS}, v{tt}, 4, v{vS}")
    e("s_nop 7")
    cnt = 0
    for ni in range(2):
        e(f"s_add_u32 s75, s74, {hx((ni * 2) << 16)}")
        for mi in range(2):
            for tq in range(2):
                a = g.acc[0][mi][ni] + tq * 8
                p = pk[cnt & 1]; cnt += 1
                pack8(k, a, p)
                e(f"buffer_store_dwordx4 {vr(p, 4)}, v{vS}, s[12:15], s75 offen offset:{mi * 1024 + tq * 512}")
    e(f"s_branch L_{k.name}_end")
    maxv = max(maxv, va.n)
    k.label("L_g1_w1")
    k.vm = []
    srd(k, 8, P_W1, 0, 512 * 512 * 2)
    srd(k, 12, P_WS, WS_H, MB2)
    srd(k, 16, P_WS, WS_G, 8192)
    srd(k, 20, P_GATE, 0, 1024)
    e("s_lshl_b32 s33, s72, 7")
    va = VAlloc(4)
    l2 = ln_gemm_path(k, va, 4, 1024, 8, 1024, False, 12, 1024, dict(srdG=16, srdGW=20, s_flag=72))
    lds = max(lds, l2)
    maxv = max(maxv, va.n)
    tail(k)
    return k, maxv, lds

def gen_g3():
    k = K("g3_kernel")
    e = k.e
    head(k, 224)
    e("s_and_b32 s37, s35, 3")
    e("s_lshl_b32 s37, s37, 2")
    e("s_and_b32 s38, s36, 3")
    e("s_add_u32 s70, s37, s38")
    e("s_lshr_b32 s37, s35, 2")
    e("s_mul_i32 s37, s37, 7")
    e("s_lshr_b32 s38, s36, 2")
    e("s_add_u32 s71, s37, s38")
    e("s_lshl_b32 s32, s70, 7")
    e("s_lshl_b32 s33, s71, 7")
    e("s_waitcnt lgkmcnt(0)")
    srd(k, 4, P_WS, WS_X1, MB2)
    srd(k, 8, P_W3, 0, 512 * 1792 * 2)
    srd(k, 12, P_WS, WS_H3, H3_BYTES)
    va = VAlloc(4)
    lds = ln_gemm_path(k, va, 4, 1024, 8, 3584, True, 12, 3584, None)
    tail(k)
    return k, va.n, lds

def tile64_ids(k):
    e = k.e
    e("s_lshl_b32 s37, s35, 2")
    e("s_and_b32 s38, s36, 3")
    e("s_add_u32 s70, s37, s38")
    e("s_lshr_b32 s71, s36, 2")
    e("s_lshl_b32 s32, s70, 6")
    e("s_lshl_b32 s33, s71, 6")

def gen_g2():
    k = K("g2_kernel")
    e = k.e
    head(k, 256)
    tile64_ids(k)
    e("s_waitcnt lgkmcnt(0)")
    srd(k, 4, P_WS, WS_H, MB2)
    srd(k, 8, P_W2, 0, 512 * 512 * 2)
    srd(k, 12, P_WS, WS_X1, MB2)
    srd(k, 16, P_X, 0, MB2)
    va = VAlloc(4)
    segs = [Seg(128, 4, 1024, 8, 1024, a0=i * 256, b0=i * 128, shift=sh) for i, sh in enumerate((-1, 1, -2, 2))]
    g = Gemm(k, va, 64, 64, 2, 2, 4, 2, segs, True, True,
             wave_v=2, lane_v=1, s_row0=32, s_col0=33, s_wave=34, stmp=28)
    g.alloc()
    g.setup_dma()
    g.prologue_dma()
    vT, t0, t1 = va.a(), va.a(), va.a()
    xr = va.a(8, 4)
    pk = [va.a(4, 4), va.a(4, 4)]
    e("s_lshr_b32 s37, s34, 1")
    e("s_and_b32 s38, s34, 1")
    e("s_lshl_b32 s39, s37, 5")
    e("s_add_u32 s39, s39, s32")
    e(f"v_and_b32 v{t0}, 31, v1")
    e(f"v_add_u32 v{t0}, s39, v{t0}")
    e(f"v_lshlrev_b32 v{vT}, 10, v{t0}")
    e("s_lshl_b32 s39, s38, 5")
    e("s_add_u32 s39, s39, s33")
    e("s_lshl_b32 s39, s39, 1")
    e(f"v_add_u32 v{vT}, s39, v{vT}")
    e(f"v_lshrrev_b32 v{t1}, 5, v1")
    e(f"v_lshl_add_u32 v{t0}, v{t1}, 3, v{vT}")
    e(f"v_lshl_add_u32 v{vT}, v{t1}, 4, v{vT}")
    for q in range(4):
        k.vmem(f"buffer_load_dwordx2 {vr(xr + 2 * q, 2)}, v{t0}, s[16:19], 0 offen offset:{q * 16}", "xres")
    g.setup_reads()
    g.run()
    k.wait_vm("xres")
    e("s_nop 7")
    e("s_nop 3")
    a = g.acc[0][0][0]
    for q in range(4):
        for d in range(2):
            i = 4 * q + 2 * d
            e(f"v_lshlrev_b32 v{t0}, 16, v{xr + 2 * q + d}")
            e(f"v_and_b32 v{t1}, 0xffff0000, v{xr + 2 * q + d}")
            e(f"v_add_f32 v{a+i}, v{a+i}, v{t0}")
            e(f"v_add_f32 v{a+i+1}, v{a+i+1}, v{t1}")
    for hf in range(2):
        pack8(k, a + hf * 8, pk[hf])
        e(f"buffer_store_dwordx4 {vr(pk[hf], 4)}, v{vT}, s[12:15], 0 offen offset:{hf * 32}")
    tail(k)
    return k, va.n, g.lds_bytes

def gen_g4():
    k = K("g4_kernel")
    e = k.e
    head(k, 256)
    tile64_ids(k)
    e("s_waitcnt lgkmcnt(0)")
    srd(k, 4, P_WS, WS_H3, H3_BYTES)
    srd(k, 8, P_W4, 0, 1792 * 512 * 2)
    srd(k, 12, P_OUT, 0, MB2)
    srd(k, 16, P_WS, WS_X1, MB2)
    srd(k, 20, P_WS, WS_O, MB2)
    srd(k, 24, P_WO, 0, 512 * 512 * 2)
    srd(k, 64, P_WS, WS_G, 8192)
    va = VAlloc(4)
    segs = [Seg(1792, 4, 3584, 8, 1024, acc=0), Seg(512, 20, 1024, 24, 1024, acc=1)]
    g = Gemm(k, va, 64, 64, 2, 2, 4, 2, segs, True, True,
             wave_v=2, lane_v=1, s_row0=32, s_col0=33, s_wave=34, stmp=28)
    g.alloc()
    g.setup_dma()
    g.prologue_dma()
    vT, vN, t0, t1, vg, vg1 = va.a(), va.a(), va.a(), va.a(), va.a(), va.a()
    xr = va.a(8, 4)
    pk = va.a(8, 4)
    e("s_lshr_b32 s37, s34, 1")
    e("s_and_b32 s38, s34, 1")
    e("s_lshl_b32 s39, s37, 5")
    e("s_add_u32 s39, s39, s32")
    e(f"v_and_b32 v{t0}, 31, v1")
    e(f"v_add_u32 v{t0}, s39, v{t0}")
    e(f"v_lshlrev_b32 v{vT}, 10, v{t0}")
    e(f"v_lshlrev_b32 v{t0}, 2, v{t0}")
    k.vmem(f"buffer_load_dword v{vg}, v{t0}, s[64:67], 0 offen", "epi")
    e("s_lshl_b32 s39, s38, 5")
    e("s_add_u32 s39, s39, s33")
    e("s_lshl_b32 s39, s39, 1")
    e(f"v_add_u32 v{vT}, s39, v{vT}")
    e(f"v_lshrrev_b32 v{t1}, 5, v1")
    e(f"v_lshl_add_u32 v{vN}, v{t1}, 3, v{vT}")
    e(f"v_lshl_add_u32 v{vT}, v{t1}, 4, v{vT}")
    for hf in range(2):
        k.vmem(f"buffer_load_dwordx4 {vr(xr + 4 * hf, 4)}, v{vT}, s[16:19], 0 offen offset:{hf * 32}", "epi")
    g.setup_reads()
    g.run()
    e("s_waitcnt vmcnt(0)")
    e(f"v_sub_f32 v{vg1}, 1.0, v{vg}")
    e("s_nop 7")
    e("s_nop 3")
    b = g.acc[0][0][0]
    a = g.acc[1][0][0]
    for i2 in range(8):
        i = 2 * i2
        e(f"v_lshlrev_b32 v{t0}, 16, v{xr + i2}")
        e(f"v_and_b32 v{t1}, 0xffff0000, v{xr + i2}")
        e(f"v_add_f32 v{b+i}, v{b+i}, v{t0}")
        e(f"v_add_f32 v{b+i+1}, v{b+i+1}, v{t1}")
        e(f"v_mul_f32 v{b+i}, v{b+i}, v{vg1}")
        e(f"v_mul_f32 v{b+i+1}, v{b+i+1}, v{vg1}")
        e(f"v_fmac_f32 v{b+i}, v{a+i}, v{vg}")
        e(f"v_fmac_f32 v{b+i+1}, v{a+i+1}, v{vg}")
        e(f"v_cvt_pk_bf16_f32 v{pk + i2}, v{b+i}, v{b+i+1}")
    for q in range(4):
        e(f"buffer_store_dwordx2 {vr(pk + 2 * q, 2)}, v{vN}, s[12:15], 0 offen offset:{q * 16}")
    tail(k)
    return k, va.n, g.lds_bytes

from attn import gen_attn

def build():
    ks = [gen_g1(), gen_attn(), gen_g2(), gen_g3(), gen_g4()]
    grids = {"g1_kernel": (256, 256), "attn_kernel": (256, 256), "g2_kernel": (256, 256), "g3_kernel": (224, 256), "g4_kernel": (256, 256)}
    hdr = open("gated_mix__mha_block__mixer_s_mlp__prompt.s.ref").read().split("; Override")[0]
    out = hdr
    for k, nv, lds in ks:
        gx, bx = grids[k.name]
        out += f"; @launch kernel={k.name} grid=({gx},1,1) block=({bx},1,1) lds={lds}\n"
    out += '.amdgcn_target "amdgcn-amd-amdhsa--gfx950"\n'
    for k, nv, lds in ks:
        out += kernel_text(k, nv)
    return out

if __name__ == "__main__":
    dst = sys.argv[1] if len(sys.argv) > 1 else "gated_mix__mha_block__mixer_s_mlp__prompt.s"
    open(dst, "w").write(build())
```

```python
import struct

def f2u(x):
    return struct.unpack("<I", struct.pack("<f", x))[0]

def hx(x):
    return "0x%x" % (x & 0xffffffff)

def fl(x):
    return hx(f2u(x))

class K:
    def __init__(self, name):
        self.name = name
        self.L = []
        self.vm = []
        self.uid = 0
    def e(self, s):
        self.L.append("    " + s)
    def c(self, s):
        self.L.append("    ; " + s)
    def label(self, l):
        self.L.append(l + ":")
    def newlabel(self, base):
        self.uid += 1
        return f"L_{self.name}_{base}_{self.uid}"
    def vmem(self, s, tag):
        self.e(s)
        self.vm.append(tag)
    def wait_vm(self, tag, extra=""):
        idx = [i for i, t in enumerate(self.vm) if t == tag]
        assert idx, tag
        n = len(self.vm) - 1 - max(idx)
        assert n <= 63, n
        self.e(f"s_waitcnt vmcnt({n}){extra}")
    def vm_count_after(self, tag):
        idx = [i for i, t in enumerate(self.vm) if t == tag]
        assert idx, tag
        return len(self.vm) - 1 - max(idx)
    STAMP = False
    MODE = ""
    def stamp(self, i, mode=""):
        if not K.STAMP:
            return
        if i >= 2 and mode != K.MODE:
            return
        if i == 0:
            self.e("s_memrealtime s[98:99]")
        self.e(f"s_memtime s[{84+2*i}:{85+2*i}]")
        self.e("s_waitcnt lgkmcnt(0)")
        self.nstamp = max(getattr(self, "nstamp", 0), i + 1)
    def stamp_store(self, slot):
        if not K.STAMP:
            return
        e = self.e
        e("s_memrealtime s[82:83]")
        e("s_waitcnt lgkmcnt(0)")
        e(f"s_add_u32 s4, s62, {hx(0x2000000 + slot * 0x40000)}")
        e("s_addc_u32 s5, s63, 0")
        e("s_mov_b32 s6, 0x40000")
        e("s_mov_b32 s7, 0x20000")
        e("s_mov_b64 exec, 1")
        e("s_lshl_b32 s3, s2, 9")
        e("s_lshl_b32 s81, s34, 6")
        e("s_add_u32 s3, s3, s81")
        e("v_mov_b32 v1, 0")
        for i in range(self.nstamp):
            e(f"v_mov_b32 v2, s{84+2*i}")
            e(f"buffer_store_dword v2, v1, s[4:7], s3 offen offset:{4*i}")
        e("v_mov_b32 v2, s98")
        e(f"buffer_store_dword v2, v1, s[4:7], s3 offen offset:48")
        e("s_getreg_b32 s81, hwreg(HW_REG_HW_ID)")
        e("v_mov_b32 v2, s81")
        e(f"buffer_store_dword v2, v1, s[4:7], s3 offen offset:52")
        e("s_getreg_b32 s81, hwreg(HW_REG_XCC_ID)")
        e("v_mov_b32 v2, s81")
        e(f"buffer_store_dword v2, v1, s[4:7], s3 offen offset:56")
        e("v_mov_b32 v2, s82")
        e(f"buffer_store_dword v2, v1, s[4:7], s3 offen offset:60")
    def text(self):
        return "\n".join(self.L) + "\n"

def vr(b, n):
    return f"v[{b}:{b+n-1}]" if n > 1 else f"v{b}"

def sr(b, n):
    return f"s[{b}:{b+n-1}]" if n > 1 else f"s{b}"

def kernel_text(k, nvgpr, nsgpr=None):
    nsgpr = nsgpr or (100 if K.STAMP else 96)
    acc = (nvgpr + 3) // 4 * 4
    return f"""
.text
.globl {k.name}
.p2align 8
.type {k.name},@function
{k.name}:
{k.text()}
.section .rodata,"a"
.p2align 6
.amdhsa_kernel {k.name}
  .amdhsa_next_free_vgpr {nvgpr}
  .amdhsa_next_free_sgpr {nsgpr}
  .amdhsa_accum_offset {acc}
  .amdhsa_group_segment_fixed_size 0
  .amdhsa_kernarg_size 96
  .amdhsa_user_sgpr_count 2
  .amdhsa_user_sgpr_kernarg_segment_ptr 1
  .amdhsa_system_sgpr_workgroup_id_x 1
.end_amdhsa_kernel
"""
```

```python
import os
from asmlib import *
from common import *
from gemm import VAlloc

def attn_role(k, va, T0, NT, first, last, px):
    e = k.e
    CH = 8
    assert NT % CH == 0
    NCH = NT // CH
    VOFF = NT * 1024
    e("s_setprio 3")
    e("s_lshl_b32 s37, s35, 2")
    e("s_lshr_b32 s38, s36, 3")
    e("s_add_u32 s70, s37, s38")
    e("s_and_b32 s71, s36, 7")
    Q = va.a(4, 4)
    C = va.a(16, 4)
    S = [va.a(16, 4), va.a(16, 4)]
    O = va.a(16, 4)
    P = va.a(8, 4)
    Kf = [va.a(4, 4), va.a(4, 4)]
    Vf = [[va.a(4, 4), va.a(4, 4)], [va.a(4, 4), va.a(4, 4)]]
    LM = va.a(4, 4) if not first else None
    OP = va.a(8, 4) if not first else None
    vD, vKa, vVa, vL16, t0, t1, t2 = [va.a() for _ in range(7)]
    vkn = t2
    e(f"v_lshlrev_b32 v{vKa}, 4, v1")
    e(f"v_lshlrev_b32 v{vL16}, 4, v1")
    e("s_lshl_b32 s72, s70, 16")
    e("s_lshl_b32 s73, s34, 10")
    e("s_waitcnt lgkmcnt(0)")
    k.stamp(1)
    srd(k, 4, P_WS, WS_K, MB2)
    srd(k, 8, P_WS, WS_V, MB2)
    srd(k, 12, P_WS, WS_Q, MB2)
    srd(k, 16, P_WS, WS_KN, 4096)
    srd(k, 20, P_WS, WS_O, MB2)
    srd(k, 24, P_WS, WS_PART, PART_BYTES)
    e(f"s_add_u32 s74, s72, {T0 * 1024}")
    e("s_add_u32 s74, s74, s73")
    e("s_mov_b32 s75, s73")
    def dma_chunk():
        e("s_mov_b32 m0, s75")
        e("s_nop 0")
        e(f"buffer_load_dwordx4 v{vL16}, s[4:7], s74 offen lds")
        e(f"s_add_u32 m0, s75, {VOFF}")
        e("s_nop 0")
        e(f"buffer_load_dwordx4 v{vL16}, s[8:11], s74 offen lds")
        e(f"s_add_u32 s74, s74, {CH * 1024}")
        e(f"s_add_u32 s75, s75, {CH * 1024}")
    e("s_lshl_b32 s37, s71, 13")
    e("s_add_u32 s37, s37, s72")
    e("s_add_u32 s37, s37, s73")
    e(f"buffer_load_dwordx4 {vr(Q, 4)}, v{vL16}, s[12:15], s37 offen")
    e(f"v_and_b32 v{t0}, 31, v1")
    e(f"v_lshlrev_b32 v{t0}, 7, v{t0}")
    e("s_lshl_b32 s38, s70, 2")
    e(f"buffer_load_dword v{vkn}, v{t0}, s[16:19], s38 offen")
    e("s_mul_i32 s80, s37, 3")
    NUP = min(2, NCH)
    for c in range(NUP):
        dma_chunk()
    e(f"v_lshrrev_b32 v{t0}, 5, v1")
    e(f"v_and_b32 v{t1}, 15, v1")
    e(f"v_lshlrev_b32 v{vVa}, 4, v{t1}")
    e(f"v_lshl_add_u32 v{vVa}, v{t0}, 8, v{vVa}")
    e(f"v_add_u32 v{vVa}, {VOFF}, v{vVa}")
    for b in range(2):
        for t in range(2):
            for i in range(4):
                e(f"v_mov_b32 v{Vf[b][t] + i}, 0x3f803f80")
    for i in range(8):
        e(f"v_mov_b32 v{P + i}, 0")
    for i in range(16):
        e(f"v_mov_b32 v{O + i}, 0")
    e("s_mov_b32 s76, 0xffff")
    e("s_mov_b32 s77, 0xffff")
    e(f"v_mov_b32 v{t0}, 0")
    k.stamp(2, "pro")
    e(f"s_waitcnt vmcnt({2 * NUP})")
    k.stamp(3, "pro")
    for i in range(4):
        e(f"v_dot2c_f32_bf16 v{t0}, v{Q + i}, v{Q + i}")
    for dpp in DPP_MAX:
        e("s_nop 1")
        e(f"v_max_f32_dpp v{vkn}, v{vkn}, v{vkn} {dpp}")
    e(f"v_mov_b32 v{t1}, v{t0}")
    e("s_nop 1")
    e(f"v_readlane_b32 s78, v{vkn}, 63")
    e(f"v_permlane32_swap_b32 v{t0}, v{t1}")
    e("s_nop 1")
    e(f"v_add_f32 v{t0}, v{t0}, v{t1}")
    e(f"v_mul_f32 v{t0}, s78, v{t0}")
    e(f"v_sqrt_f32 v{t0}, v{t0}")
    e("s_nop 0")
    e(f"v_mul_f32 v{t0}, {fl(-1.01)}, v{t0}")
    for i in range(16):
        e(f"v_mov_b32 v{C + i}, v{t0}")
    def merge_part():
        e(f"v_sub_f32 v{t2}, v{C}, v{LM + 1}")
        e(f"v_exp_f32 v{t2}, v{t2}")
        e("s_nop 0")
        for i in range(8):
            e(f"v_fmac_f32 v{O + i}, v{OP + i}, v{t2}")
        e(f"v_fmac_f32 v{O + 8}, v{LM}, v{t2}")
    k.stamp(4, "pro")
    e(f"s_waitcnt vmcnt({2 * (NUP - 1)})")
    e("s_barrier")
    k.stamp(2)
    k.stamp(5, "pro")
    e(f"ds_read_b128 {vr(Kf[0], 4)}, v{vKa}")
    e(f"ds_read_b128 {vr(Kf[1], 4)}, v{vKa} offset:1024")
    e("s_waitcnt lgkmcnt(1)")
    e(f"v_mfma_f32_32x32x16_bf16 {vr(S[0], 16)}, {vr(Kf[0], 4)}, {vr(Q, 4)}, {vr(C, 16)}")
    for c in range(NUP, NCH):
        dma_chunk()
    if not first:
        for c in range(2):
            e(f"buffer_load_dwordx4 {vr(OP + 4 * c, 4)}, v{vL16}, s[24:27], s80 offen offset:{c * 1024}")
        e(f"buffer_load_dwordx4 {vr(LM, 4)}, v{vL16}, s[24:27], s80 offen offset:2048")
    e(f"s_mov_b32 s79, 0")
    e(f"s_setprio {os.environ.get('APRIO', '0')}")
    e("s_nop 7")
    e("s_nop 3")
    k.label(f"L_{px}_loop")
    for u in range(CH):
        if u == 5:
            e("s_cmp_eq_u32 s79, 0")
            e(f"s_cbranch_scc1 L_{px}_sync")
            k.label(f"L_{px}_synced")
        b = u % 2
        pv = [f"v_mfma_f32_32x32x16_bf16 {vr(O, 16)}, {vr(Vf[b ^ 1][t], 4)}, {vr(P + 4 * t, 4)}, {vr(O, 16)}" for t in range(2)]
        qk = f"v_mfma_f32_32x32x16_bf16 {vr(S[b ^ 1], 16)}, {vr(Kf[b ^ 1], 4)}, {vr(Q, 4)}, {vr(C, 16)}"
        s = S[b]
        e("s_waitcnt lgkmcnt(0)")
        e(pv[0])
        e(f"ds_read_b128 {vr(Kf[b], 4)}, v{vKa} offset:{(u + 2) * 1024}")
        e("s_mov_b64 exec, s[76:77]")
        e(f"ds_read_b128 {vr(Vf[b][0], 4)}, v{vVa} offset:{u * 1024}")
        e(f"ds_read_b128 {vr(Vf[b][1], 4)}, v{vVa} offset:{u * 1024 + 512}")
        e("s_mov_b64 exec, -1")
        for i in range(16):
            e(f"v_exp_f32 v{s + i}, v{s + i}")
            if i == 9:
                e(pv[1])
            if i >= 2 and i % 2 == 0:
                e(f"v_cvt_pk_bf16_f32 v{P + i // 2 - 1}, v{s + i - 2}, v{s + i - 1}")
            if i == 4:
                e(qk)
        e("s_nop 0")
        e(f"v_cvt_pk_bf16_f32 v{P + 7}, v{s + 14}, v{s + 15}")
    e(f"v_add_u32 v{vKa}, {CH * 1024}, v{vKa}")
    e(f"v_add_u32 v{vVa}, {CH * 1024}, v{vVa}")
    e("s_add_u32 s79, s79, 1")
    e(f"s_cmp_lt_u32 s79, {NCH}")
    e(f"s_cbranch_scc1 L_{px}_loop")
    k.stamp(3)
    e("s_waitcnt lgkmcnt(0)")
    for t in range(2):
        e(f"v_mfma_f32_32x32x16_bf16 {vr(O, 16)}, {vr(Vf[1][t], 4)}, {vr(P + 4 * t, 4)}, {vr(O, 16)}")
    e("s_lshl_b32 s37, s71, 8")
    e("s_lshl_b32 s38, s34, 5")
    e("s_add_u32 s37, s37, s38")
    e(f"v_and_b32 v{t0}, 31, v1")
    e(f"v_add_u32 v{t0}, s37, v{t0}")
    e(f"v_lshlrev_b32 v{vD}, 10, v{t0}")
    e(f"v_lshrrev_b32 v{t0}, 5, v1")
    e(f"v_lshl_add_u32 v{vD}, v{t0}, 4, v{vD}")
    e("s_lshl_b32 s38, s70, 5")
    e(f"v_mov_b32 v{t1}, {fl(2.0 ** -64)}")
    e("s_nop 5")
    if not first:
        merge_part()
    e(f"v_cmp_ngt_f32 vcc, v{O + 8}, v{t1}")
    e(f"s_cbranch_vccnz L_{px}_slow")
    k.label(f"L_{px}_fin")
    if last:
        e(f"v_rcp_f32 v{t0}, v{O + 8}")
        e("s_nop 0")
        for i in range(8):
            e(f"v_mul_f32 v{O + i}, v{O + i}, v{t0}")
        pack8(k, O, P)
        e(f"buffer_store_dwordx4 {vr(P, 4)}, v{vD}, s[20:23], s38 offen{sc('o')}")
    else:
        e(f"v_mov_b32 v{O + 9}, v{C}")
        for c in range(3):
            e(f"buffer_store_dwordx4 {vr(O + 4 * c, 4)}, v{vL16}, s[24:27], s80 offen offset:{c * 1024}{sc('p')}")
    e(f"s_branch L_{k.name}_fin")
    k.label(f"L_{px}_sync")
    e("s_waitcnt vmcnt(0)")
    e("s_barrier")
    e(f"s_branch L_{px}_synced")
    k.label(f"L_{px}_slow")
    e(f"v_lshlrev_b32 v{vKa}, 4, v1")
    if first:
        e(f"v_mov_b32 v{t0}, {fl(-3.0e38)}")
    else:
        e(f"v_sub_f32 v{t0}, 0, v{LM + 1}")
    e("s_mov_b32 s79, 0")
    k.label(f"L_{px}_slow_max")
    e(f"ds_read_b128 {vr(Kf[0], 4)}, v{vKa}")
    e("s_waitcnt lgkmcnt(0)")
    e(f"v_mfma_f32_32x32x16_bf16 {vr(S[0], 16)}, {vr(Kf[0], 4)}, {vr(Q, 4)}, 0")
    e(f"v_add_u32 v{vKa}, 1024, v{vKa}")
    e("s_nop 15")
    for i in range(0, 16, 2):
        e(f"v_max3_f32 v{t0}, v{S[0] + i}, v{S[0] + i + 1}, v{t0}")
    e("s_add_u32 s79, s79, 1")
    e(f"s_cmp_lt_u32 s79, {NT}")
    e(f"s_cbranch_scc1 L_{px}_slow_max")
    e(f"v_mov_b32 v{t1}, v{t0}")
    e("s_nop 1")
    e(f"v_permlane32_swap_b32 v{t0}, v{t1}")
    e("s_nop 1")
    e(f"v_max_f32 v{t0}, v{t0}, v{t1}")
    e(f"v_sub_f32 v{t0}, 0, v{t0}")
    for i in range(16):
        e(f"v_mov_b32 v{C + i}, v{t0}")
        e(f"v_mov_b32 v{O + i}, 0")
    e(f"v_lshlrev_b32 v{vKa}, 4, v1")
    e(f"v_subrev_u32 v{vVa}, {NT * 1024}, v{vVa}")
    e("s_mov_b32 s79, 0")
    k.label(f"L_{px}_slow_loop")
    e(f"ds_read_b128 {vr(Kf[0], 4)}, v{vKa}")
    e("s_mov_b64 exec, s[76:77]")
    e(f"ds_read_b128 {vr(Vf[0][0], 4)}, v{vVa}")
    e(f"ds_read_b128 {vr(Vf[0][1], 4)}, v{vVa} offset:512")
    e("s_mov_b64 exec, -1")
    e("s_waitcnt lgkmcnt(0)")
    e(f"v_mfma_f32_32x32x16_bf16 {vr(S[0], 16)}, {vr(Kf[0], 4)}, {vr(Q, 4)}, {vr(C, 16)}")
    e(f"v_add_u32 v{vKa}, 1024, v{vKa}")
    e(f"v_add_u32 v{vVa}, 1024, v{vVa}")
    e("s_nop 15")
    for i in range(16):
        e(f"v_exp_f32 v{S[0] + i}, v{S[0] + i}")
    e("s_nop 0")
    pack8(k, S[0], P)
    pack8(k, S[0] + 8, P + 4)
    e("s_nop 1")
    for t in range(2):
        e(f"v_mfma_f32_32x32x16_bf16 {vr(O, 16)}, {vr(Vf[0][t], 4)}, {vr(P + 4 * t, 4)}, {vr(O, 16)}")
    e("s_add_u32 s79, s79, 1")
    e(f"s_cmp_lt_u32 s79, {NT}")
    e(f"s_cbranch_scc1 L_{px}_slow_loop")
    e("s_nop 15")
    if not first:
        merge_part()
    e(f"s_branch L_{px}_fin")
    return 2 * NT * 1024 + 2048
```

```python
import math, os
SC = os.environ.get('SC', 'qhp3oxz')
def sc(c):
    return ' sc1' if c in SC else ''
from asmlib import *

WS_Q, WS_K, WS_V = 0x000000, 0x200000, 0x400000
WS_H, WS_X1, WS_O = 0x600000, 0x800000, 0xA00000
WS_H3 = 0xC00000
WS_KN = 0x1304000
WS_PST = 0x1310000
WS_PG = 0x1360000
WS_CS3 = 0x1390000
WS_PART = 0x1400000
PART_BYTES = 32 * 64 * 3072
MB2 = 0x200000
H3_BYTES = 2048 * 1792 * 2

P_X, P_WQKV, P_WO, P_W1, P_W2, P_W3, P_W4, P_GATE, P_OUT, P_WS = 40, 42, 44, 48, 50, 52, 54, 56, 58, 62
LOG2E = 1.4426950408889634
QSCALE = 0.25 * LOG2E
GA1 = -2.0 * math.sqrt(2.0 / math.pi) * LOG2E
GA3 = GA1 * 0.044715

DPP_MAX = ("row_shr:1 row_mask:0xf bank_mask:0xf", "row_shr:2 row_mask:0xf bank_mask:0xf",
           "row_shr:4 row_mask:0xf bank_mask:0xf", "row_shr:8 row_mask:0xf bank_mask:0xf",
           "row_bcast:15 row_mask:0xa bank_mask:0xf", "row_bcast:31 row_mask:0xc bank_mask:0xf")

def srd(k, d, p, off, size):
    if off:
        k.e(f"s_add_u32 s{d}, s{p}, {hx(off)}")
        k.e(f"s_addc_u32 s{d+1}, s{p+1}, 0")
    else:
        k.e(f"s_mov_b32 s{d}, s{p}")
        k.e(f"s_mov_b32 s{d+1}, s{p+1}")
    k.e(f"s_mov_b32 s{d+2}, {hx(size)}")
    k.e(f"s_mov_b32 s{d+3}, 0x20000")

def head(k, nwg, fused=False):
    k.e(f"s_cmp_ge_u32 s2, {nwg}")
    k.e(f"s_cbranch_scc1 L_{k.name}_end")
    k.stamp(0)
    k.e("s_load_dwordx16 s[40:55], s[0:1], 0")
    k.e("s_load_dwordx8 s[56:63], s[0:1], 64")
    k.e("v_and_b32 v1, 63, v0")
    k.e("v_lshrrev_b32 v2, 6, v0")
    k.e("s_nop 0")
    k.e("v_readfirstlane_b32 s34, v2")
    k.e("s_and_b32 s35, s2, 7")
    k.e("s_lshr_b32 s36, s2, 3")
    if fused:
        k.e("s_lshr_b32 s33, s36, 5")
        k.e("s_xor_b32 s33, s33, s36")
        k.e("s_and_b32 s33, s33, 1")
        k.e("s_lshr_b32 s36, s36, 1")

SLOTS = {}
def tail(k):
    k.label(f"L_{k.name}_fin")
    if K.STAMP:
        k.stamp(4)
        k.e("s_waitcnt vmcnt(0)")
        k.stamp(5)
        k.nstamp = 6
        k.stamp_store(SLOTS.setdefault(k.name, len(SLOTS)))
    k.label(f"L_{k.name}_end")
    k.e("s_endpgm")

def pack8(k, src, dst):
    for i in range(4):
        k.e(f"v_cvt_pk_bf16_f32 v{dst+i}, v{src+2*i}, v{src+2*i+1}")

def interleave(k, chains):
    n = max(len(c) for c in chains)
    for i in range(n):
        for c in chains:
            if i < len(c):
                if c[i] == "NOP":
                    if len(chains) < 2:
                        k.e("s_nop 0")
                    continue
                k.e(c[i])

def ln_gelu_pair(y, cs, nmean, rstd, t, cA1, cA3, one):
    p = lambda r: f"v[{r}:{r+1}]"
    return [
        f"v_pk_fma_f32 {p(y)}, {p(cs)}, {p(nmean)}, {p(y)} op_sel_hi:[1,0,1]",
        f"v_pk_mul_f32 {p(y)}, {p(y)}, {p(rstd)} op_sel_hi:[1,0]",
        f"v_pk_mul_f32 {p(t)}, {p(y)}, {p(y)}",
        f"v_pk_fma_f32 {p(t)}, {p(t)}, {p(cA3)}, {p(cA1)} op_sel_hi:[1,0,0]",
        f"v_pk_mul_f32 {p(t)}, {p(t)}, {p(y)}",
        f"v_exp_f32 v{t}, v{t}",
        f"v_exp_f32 v{t+1}, v{t+1}",
        "NOP",
        f"v_pk_add_f32 {p(t)}, {p(t)}, {p(one)} op_sel_hi:[1,0]",
        f"v_rcp_f32 v{t}, v{t}",
        f"v_rcp_f32 v{t+1}, v{t+1}",
        "NOP",
        f"v_pk_mul_f32 {p(y)}, {p(y)}, {p(t)}",
    ]

def rstd_from_sums(k, mean, rstd):
    e = k.e
    e(f"v_mul_f32 v{mean}, {fl(-1.0 / 512)}, v{mean}")
    e(f"v_mul_f32 v{rstd}, {fl(1.0 / 512)}, v{rstd}")
    e(f"v_fma_f32 v{rstd}, -v{mean}, v{mean}, v{rstd}")
    e(f"v_max_f32 v{rstd}, 0, v{rstd}")
    e(f"v_add_f32 v{rstd}, {fl(1e-5)}, v{rstd}")
    e(f"v_rsq_f32 v{rstd}, v{rstd}")

def ln_gelu_store(k, g, va, csr, nmean, rstd, vO, s_ni, srdO, scratch=None, cls="h"):
    e = k.e
    if scratch is None:
        scratch = va.a(24, 4)
    pk = [scratch, scratch + 4]
    tmp = [scratch + 8 + 2 * j for j in range(4)]
    cA1, cA3, one = scratch + 16, scratch + 18, scratch + 20
    e(f"v_mov_b32 v{cA1}, {fl(GA1)}")
    e(f"v_mov_b32 v{cA3}, {fl(GA3)}")
    e(f"v_mov_b32 v{one}, 1.0")
    cnt = 0
    for mi in range(g.MI):
        for ni in range(g.NI):
            a = g.acc[0][mi][ni]
            for half in range(2):
                chains = [ln_gelu_pair(a + half * 8 + 2 * j, csr[ni] + half * 8 + 2 * j, nmean[mi], rstd[mi], tmp[j], cA1, cA3, one)
                          for j in range(4)]
                interleave(k, chains)
                p = pk[cnt & 1]
                cnt += 1
                pack8(k, a + half * 8, p)
                e(f"buffer_store_dwordx4 {vr(p, 4)}, v{vO[mi]}, {sr(srdO, 4)}, s{s_ni[ni]} offen offset:{half * 32}{sc(cls)}")

def prefetch(k, srd_, vlane16, vdst, s_off, nper):
    for i in range(nper):
        if i and i % 4 == 0:
            k.e(f"s_add_u32 s{s_off}, s{s_off}, 4096")
        k.e(f"buffer_load_dwordx4 {vr(vdst, 4)}, v{vlane16}, {sr(srd_, 4)}, s{s_off} offen offset:{(i % 4) * 1024}")
```

```python
from asmlib import *

class VAlloc:
    def __init__(self, start=0):
        self.n = start
    def a(self, cnt=1, align=1):
        self.n = (self.n + align - 1) // align * align
        b = self.n
        self.n += cnt
        return b

class Seg:
    def __init__(self, K, srdA, lda, srdB, ldb, a0=0, b0=0, shift=0, acc=0, rot=None, dynshift=False):
        self.K, self.srdA, self.lda, self.srdB, self.ldb = K, srdA, lda, srdB, ldb
        self.rot, self.dynshift = rot, dynshift
        self.a0, self.b0, self.shift, self.acc = a0, b0, shift, acc
        self.Akey = (srdA, lda, shift)
        self.Bkey = (srdB, ldb)

class Gemm:
    def __init__(self, k, va, TM, TN, WM, WN, NS, SUB, segs, perm, swapped, BK=64, lds_base=0,
                 xorroles=False, wave_v=None, lane_v=None, s_row0=None, s_col0=None, s_wave=None, stmp=None, stmp2=None):
        self.st2 = stmp2
        self.k, self.va = k, va
        self.TM, self.TN, self.WM, self.WN, self.NS, self.SUB, self.BK = TM, TN, WM, WN, NS, SUB, BK
        self.NW = WM * WN
        self.MI = TM // WM // 32
        self.NI = TN // WN // 32
        self.segs, self.perm, self.swapped = segs, perm, swapped
        self.lds_base = lds_base
        self.xor = xorroles
        self.wave_v, self.lane_v = wave_v, lane_v
        self.s_row0, self.s_col0, self.s_wave, self.st = s_row0, s_col0, s_wave, stmp
        self.rowA = BK * 2
        self.rowB = TN * 2
        self.KS = BK // 16
        self.Ab = TM * self.rowA
        self.Bb = BK * self.rowB
        self.subsz = self.Ab + self.Bb
        self.slot = self.subsz * SUB
        self.RPA = 1024 // self.rowA
        self.CPA = self.rowA // 16
        self.nA = self.Ab // 1024 // self.NW
        self.nB = self.Bb // 1024 // self.NW
        assert self.nA >= 1 and self.nB >= 1
        self.RPI = 1024 // self.rowB
        self.CPR = self.rowB // 16
        subs = []
        for si, s in enumerate(segs):
            assert s.K % BK == 0
            for ko in range(0, s.K, BK):
                subs.append((si, ko))
        assert len(subs) % SUB == 0
        self.stages = [subs[i:i + SUB] for i in range(0, len(subs), SUB)]
        self.nacc = max(s.acc for s in segs) + 1
        self.lds_bytes = self.slot * NS
        self.nwin = (lds_base + self.lds_bytes + 65535) // 65536
        self.win0 = lds_base // 65536

    def alloc(self):
        va = self.va
        self.acc = [[[va.a(16, 4) for _ in range(self.NI)] for _ in range(self.MI)] for _ in range(self.nacc)]
        self.X = [[va.a(4, 4) for _ in range(self.MI)] for _ in range(2)]
        self.W = [[va.a(4, 4) for _ in range(self.NI)] for _ in range(2)]
        self.vA = {}
        self.vB = {}
        for s in self.segs:
            if s.Akey not in self.vA:
                self.vA[s.Akey] = (s, [va.a() for _ in range(self.nA)])
            if s.Bkey not in self.vB:
                self.vB[s.Bkey] = (s, [va.a() for _ in range(self.nB)])
        nmi = self.MI if self.xor else 1
        self.aA = {(w, ks, mi): va.a() for w in range(self.win0, self.nwin) for ks in range(self.KS) for mi in range(nmi)}
        self.aB = {(w, ni): va.a() for w in range(self.win0, self.nwin) for ni in range(self.NI)}
        self.t = [va.a() for _ in range(6)]
        self.s_wA = self.st + 0
        self.s_wB = self.st + 1
        self.s_oA = self.st + 2
        self.s_oB = self.st + 3
        self.s_tA = self.st2 + 0
        self.s_tB = self.st2 + 1
        self.s_t2 = self.st2 + 2
        self.vAc = [va.a() for _ in range(self.nA)] if any(s.dynshift for s in self.segs) else None

    def setup_dma(self):
        k, t = self.k, self.t
        L, Wv = self.lane_v, self.wave_v
        e = k.e
        e(f"s_mul_i32 s{self.s_wA}, s{self.s_wave}, {self.nA * 1024}")
        e(f"s_mul_i32 s{self.s_wB}, s{self.s_wave}, {self.nB * 1024}")
        e(f"s_add_u32 s{self.s_wB}, s{self.s_wB}, {self.Ab}")
        sh = {8: 3, 4: 2}[self.CPA]
        e(f"v_lshrrev_b32 v{t[0]}, {sh}, v{L}")
        e(f"v_mul_u32_u24 v{t[1]}, {self.nA * self.RPA}, v{Wv}")
        e(f"v_add3_u32 v{t[0]}, v{t[0]}, v{t[1]}, s{self.s_row0}")
        e(f"v_lshrrev_b32 v{t[1]}, 4, v{L}")
        e(f"v_and_b32 v{t[2]}, {self.CPA - 1}, v{L}")
        e(f"v_xor_b32 v{t[3]}, v{t[2]}, v{t[1]}")
        if self.BK == 64:
            e(f"v_xor_b32 v{t[4]}, 4, v{t[3]}")
        else:
            e(f"v_mov_b32 v{t[4]}, v{t[3]}")
        e(f"v_lshlrev_b32 v{t[3]}, 4, v{t[3]}")
        e(f"v_lshlrev_b32 v{t[4]}, 4, v{t[4]}")
        for key, (s, regs) in self.vA.items():
            e(f"s_mov_b32 s{self.s_oA}, {s.lda}")
            e(f"v_mul_lo_u32 v{t[5]}, v{t[0]}, s{self.s_oA}")
            for j, r in enumerate(regs):
                c = (self.RPA * j + s.shift) * s.lda
                e(f"v_add_u32 v{r}, v{t[5]}, v{t[3 + (j & 1)]}")
                if c:
                    e(f"v_add_u32 v{r}, {hx(c)}, v{r}")
        sh = {16: 4, 8: 3}[self.CPR]
        e(f"v_lshrrev_b32 v{t[0]}, {sh}, v{L}")
        e(f"v_mul_u32_u24 v{t[1]}, {self.nB * self.RPI}, v{Wv}")
        e(f"v_add_u32 v{t[0]}, v{t[0]}, v{t[1]}")
        e(f"v_and_b32 v{t[2]}, {self.CPR - 1}, v{L}")
        e(f"v_lshrrev_b32 v{t[1]}, 4, v{L}")
        if self.CPR == 8:
            e(f"v_and_b32 v{t[1]}, 1, v{t[1]}")
        e(f"v_lshlrev_b32 v{t[1]}, 2, v{t[1]}")
        e(f"v_xor_b32 v{t[2]}, v{t[2]}, v{t[1]}")
        e(f"v_lshlrev_b32 v{t[2]}, 4, v{t[2]}")
        e(f"s_lshl_b32 s{self.s_oA}, s{self.s_col0}, 1")
        e(f"v_add_u32 v{t[2]}, s{self.s_oA}, v{t[2]}")
        for key, (s, regs) in self.vB.items():
            e(f"s_mov_b32 s{self.s_oA}, {s.ldb}")
            e(f"v_mul_lo_u32 v{t[5]}, v{t[0]}, s{self.s_oA}")
            for j, r in enumerate(regs):
                e(f"v_add_u32 v{r}, v{t[5]}, v{t[2]}")
                c = j * self.RPI * s.ldb
                if c:
                    e(f"v_add_u32 v{r}, {hx(c)}, v{r}")

    def setup_reads(self):
        k, t = self.k, self.t
        L, Wv = self.lane_v, self.wave_v
        e = k.e
        lg = {1: 0, 2: 1, 4: 2}[self.WN]
        lgA = {128: 7, 64: 6}[self.rowA]
        e(f"v_lshrrev_b32 v{t[0]}, {lg}, v{Wv}")
        e(f"v_and_b32 v{t[1]}, {self.WN - 1}, v{Wv}")
        e(f"v_and_b32 v{t[2]}, 31, v{L}")
        e(f"v_lshrrev_b32 v{t[3]}, 5, v{L}")
        e(f"v_mul_u32_u24 v{t[4]}, {self.TM // self.WM * self.rowA}, v{t[0]}")
        e(f"v_lshl_add_u32 v{t[4]}, v{t[2]}, {lgA}, v{t[4]}")
        if self.BK == 64:
            e(f"v_bfe_u32 v{t[5]}, v{L}, 1, 3")
        else:
            e(f"v_bfe_u32 v{t[5]}, v{L}, 2, 2")
        e(f"v_xor_b32 v{t[5]}, v{t[5]}, v{t[3]}")
        nmi = self.MI if self.xor else 1
        for ks in range(self.KS):
            for mi in range(nmi):
                r = self.aA[(self.win0, ks, mi)]
                e(f"v_xor_b32 v{r}, {2 * ks}, v{t[5]}")
                e(f"v_lshl_add_u32 v{r}, v{r}, 4, v{t[4]}")
                if self.xor:
                    e(f"v_xor_b32 v{t[2]}, {mi}, v{t[1]}")
                    e(f"v_lshl_add_u32 v{r}, v{t[2]}, {lgA + 5}, v{r}")
                if self.win0:
                    e(f"v_add_u32 v{r}, {hx(self.win0 * 65536)}, v{r}")
                for w in range(self.win0 + 1, self.nwin):
                    e(f"v_add_u32 v{self.aA[(w, ks, mi)]}, {hx((w - self.win0) * 65536)}, v{r}")
        e(f"v_bfe_u32 v{t[2]}, v{L}, 2, 2")
        e(f"v_lshl_add_u32 v{t[4]}, v{t[3]}, {2 if self.perm else 3}, v{t[2]}")
        e(f"v_mul_u32_u24 v{t[4]}, {self.rowB}, v{t[4]}")
        e(f"v_and_b32 v{t[5]}, 1, v{L}")
        e(f"v_lshl_add_u32 v{t[4]}, v{t[5]}, 3, v{t[4]}")
        if self.CPR == 8:
            e(f"v_lshrrev_b32 v{t[2]}, 1, v{t[2]}")
        e(f"v_lshlrev_b32 v{t[2]}, 2, v{t[2]}")
        e(f"v_bfe_u32 v{t[5]}, v{L}, 4, 1")
        e(f"v_lshlrev_b32 v{t[5]}, 1, v{t[5]}")
        e(f"v_bfe_u32 v{t[3]}, v{L}, 1, 1")
        e(f"v_add_u32 v{t[5]}, v{t[5]}, v{t[3]}")
        e(f"v_mul_u32_u24 v{t[3]}, {self.TN // self.WN // 8}, v{t[1]}")
        e(f"v_add_u32 v{t[5]}, v{t[5]}, v{t[3]}")
        for ni in range(self.NI):
            r = self.aB[(self.win0, ni)]
            if self.xor:
                e(f"v_xor_b32 v{t[3]}, {ni}, v{t[0]}")
                e(f"v_lshl_add_u32 v{r}, v{t[3]}, 2, v{t[5]}")
            else:
                e(f"v_add_u32 v{r}, {4 * ni}, v{t[5]}")
            e(f"v_xor_b32 v{r}, v{r}, v{t[2]}")
            e(f"v_lshl_add_u32 v{r}, v{r}, 4, v{t[4]}")
            if self.win0:
                e(f"v_add_u32 v{r}, {hx(self.win0 * 65536)}, v{r}")
            for w in range(self.win0 + 1, self.nwin):
                e(f"v_add_u32 v{self.aB[(w, ni)]}, {hx((w - self.win0) * 65536)}, v{r}")

    def dma_ops(self, st):
        ops = []
        base = self.lds_base + (st % self.NS) * self.slot
        si0, ko0 = self.stages[st][0]
        s = self.segs[si0]
        assert all(x[0] == si0 for x in self.stages[st])
        dA = self.SUB * self.BK * 2
        dB = self.SUB * self.BK * s.ldb
        init = []
        if ko0 == 0:
            if s.rot is None:
                init += [f"s_mov_b32 s{self.s_oA}, {hx(s.a0)}", f"s_mov_b32 s{self.s_oB}, {hx(s.b0 * s.ldb)}"]
            else:
                init += [f"s_mul_i32 s{self.s_oA}, s{s.rot}, {hx(dA)}", f"s_mul_i32 s{self.s_oB}, s{s.rot}, {hx(dB)}"]
                if s.a0:
                    init.append(f"s_add_u32 s{self.s_oA}, s{self.s_oA}, {hx(s.a0)}")
                if s.b0:
                    init.append(f"s_add_u32 s{self.s_oB}, s{self.s_oB}, {hx(s.b0 * s.ldb)}")
        else:
            init += [f"s_add_u32 s{self.s_oA}, s{self.s_oA}, {hx(dA)}", f"s_add_u32 s{self.s_oB}, s{self.s_oB}, {hx(dB)}"]
            if s.rot is not None:
                init += [f"s_cmp_eq_u32 s{self.s_oA}, {hx(s.a0 + s.K * 2)}",
                         f"s_cselect_b32 s{self.s_oA}, {hx(s.a0)}, s{self.s_oA}",
                         f"s_cselect_b32 s{self.s_oB}, {hx(s.b0 * s.ldb)}, s{self.s_oB}"]
        if s.dynshift:
            assert self.SUB == 1
            init += [f"s_lshr_b32 s{self.s_t2}, s{self.s_oA}, 9",
                     f"s_add_u32 s{self.s_t2}, s{self.s_t2}, 1",
                     f"s_lshl_b32 s{self.s_t2}, s{self.s_t2}, 10",
                     f"s_sub_u32 s{self.s_tA}, 0, s{self.s_t2}",
                     f"s_bitcmp1_b32 s{self.s_oA}, 8",
                     f"s_cselect_b32 s{self.s_t2}, s{self.s_t2}, s{self.s_tA}"]
            for j, r in enumerate(self.vA[s.Akey][1]):
                init.append(f"v_add_u32 v{self.vAc[j]}, s{self.s_t2}, v{r}")
        for u in range(self.SUB):
            sb = base + u * self.subsz
            sa_, sb_ = self.s_oA, self.s_oB
            for j, r in enumerate(self.vAc if s.dynshift else self.vA[s.Akey][1]):
                pre = init
                init = []
                if j == 0 and u:
                    pre = pre + [f"s_add_u32 s{self.s_tA}, s{self.s_oA}, {hx(u * self.BK * 2)}"]
                pre = pre + [f"s_add_u32 m0, s{self.s_wA}, {hx(sb + j * 1024)}", "s_nop 0"]
                ops.append((pre, f"buffer_load_dwordx4 v{r}, {sr(s.srdA, 4)}, s{self.s_tA if u else self.s_oA} offen lds", st))
            for j, r in enumerate(self.vB[s.Bkey][1]):
                pre = []
                if j == 0 and u:
                    pre.append(f"s_add_u32 s{self.s_tB}, s{self.s_oB}, {hx(u * self.BK * s.ldb)}")
                pre = pre + [f"s_add_u32 m0, s{self.s_wB}, {hx(sb + j * 1024)}", "s_nop 0"]
                ops.append((pre, f"buffer_load_dwordx4 v{r}, {sr(s.srdB, 4)}, s{self.s_tB if u else self.s_oB} offen lds", st))
        return ops

    def emit_op(self, o):
        for p in o[0]:
            self.k.e(p)
        self.k.vmem(o[1], ("dma", id(self), o[2]))

    def reads(self, st, step, buf):
        e = self.k.e
        u, ks = divmod(step, self.KS)
        sb = self.lds_base + (st % self.NS) * self.slot + u * self.subsz
        n = 0
        w = sb // 65536
        assert (sb % 65536) + self.subsz <= 65536, "substage straddles a 64K window"
        for mi in range(self.MI):
            off = sb + (0 if self.xor else mi * 32 * self.rowA)
            r = self.aA[(w, ks, mi if self.xor else 0)]
            e(f"ds_read_b128 {vr(self.X[buf][mi], 4)}, v{r} offset:{off - w * 65536}")
            n += 1
        for ni in range(self.NI):
            for r2 in range(2):
                off = sb + self.Ab + ks * 16 * self.rowB + r2 * (8 if self.perm else 4) * self.rowB
                r = self.aB[(w, ni)]
                e(f"ds_read_b64_tr_b16 {vr(self.W[buf][ni] + 2 * r2, 2)}, v{r} offset:{off - w * 65536}")
                n += 1
        return n

    def mfma(self, st, step, buf, mi, ni, first):
        si, ko = self.stages[st][step // self.KS]
        a = self.acc[self.segs[si].acc][mi][ni]
        x, w = vr(self.X[buf][mi], 4), vr(self.W[buf][ni], 4)
        c = "0" if first else vr(a, 16)
        if self.swapped:
            return f"v_mfma_f32_32x32x16_bf16 {vr(a, 16)}, {w}, {x}, {c}"
        return f"v_mfma_f32_32x32x16_bf16 {vr(a, 16)}, {x}, {w}, {c}"

    def prologue_dma(self, n=None):
        n = min(self.NS, len(self.stages)) if n is None else n
        self.npro = n
        self.k.stamp(2, "pro")
        for st in range(n):
            for o in self.dma_ops(st):
                self.emit_op(o)
        self.k.stamp(3, "pro")

    def run(self, extra=None, extra_reads=None):
        k = self.k
        nst = len(self.stages)
        spS = self.KS * self.SUB
        nm = self.MI * self.NI
        seen = set()
        k.stamp(4, "pro")
        k.wait_vm(("dma", id(self), 0))
        k.e("s_barrier")
        k.stamp(2)
        k.stamp(5, "pro")
        g = 0
        pend = []
        for st in range(self.npro, min(self.NS, nst)):
            pend += self.dma_ops(st)
        rate = 0.0
        credit = 0.0
        if pend:
            rate = len(pend) / float(nm * max(spS - 1, 1))
        nr = self.reads(0, 0, 0)
        if extra_reads:
            nr += extra_reads(0, 0)
        for st in range(nst):
            for step in range(spS):
                buf = g & 1
                last = step == spS - 1
                if not last:
                    nr = self.reads(st, step + 1, buf ^ 1)
                    if extra_reads:
                        nr += extra_reads(g + 1, buf ^ 1)
                    k.e(f"s_waitcnt lgkmcnt({nr})")
                elif st + 1 < nst:
                    for o in pend:
                        self.emit_op(o)
                    pend = []
                    n = k.vm_count_after(("dma", id(self), st + 1))
                    k.e(f"s_waitcnt vmcnt({n}) lgkmcnt(0)")
                    k.e("s_barrier")
                    nr = self.reads(st + 1, 0, buf ^ 1)
                    if extra_reads:
                        nr += extra_reads(g + 1, buf ^ 1)
                    if st + self.NS < nst:
                        pend = self.dma_ops(st + self.NS)
                        rate = len(pend) / float(nm * spS)
                        credit = 0.5
                else:
                    k.e("s_waitcnt lgkmcnt(0)")
                si, ko = self.stages[st][step // self.KS]
                accid = self.segs[si].acc
                first = accid not in seen
                seen.add(accid)
                for mi in range(self.MI):
                    for ni in range(self.NI):
                        k.e(self.mfma(st, step, buf, mi, ni, first))
                        credit += rate
                        while pend and credit >= 1.0:
                            self.emit_op(pend.pop(0))
                            credit -= 1.0
                if extra:
                    for x in extra(st, step, buf, g):
                        k.e(x)
                g += 1
        k.stamp(3)
```

```python
import sys, math, os
from asmlib import *
from common import *
from gemm import *
from attn8 import attn_role

GK = dict(wave_v=2, lane_v=1, s_row0=32, s_col0=33, s_wave=34, stmp=28, stmp2=76)
NPRO = int(os.environ.get('NPRO', '2'))

def w1_path(k, va, srdA, srdB, srdO):
    g = Gemm(k, va, 128, 128, 2, 2, 4, 1, [Seg(512, srdA, 1024, srdB, 1024, rot=79)], False, True, xorroles=True, **GK)
    g.alloc()
    STAT = g.lds_bytes
    s1, s2, cs, dm = va.a(), va.a(), va.a(), va.a()
    ones = va.a()
    e = k.e
    g.setup_dma()
    g.prologue_dma(NPRO)
    g.setup_reads()
    for r in (s1, s2, cs):
        e(f"v_mov_b32 v{r}, 0")
    e(f"v_mov_b32 v{ones}, 0x3f803f80")
    def extra(st, step, buf, gs):
        l = []
        x = g.X[buf][0]
        w = g.W[buf][0]
        for i in range(4):
            l.append(f"v_dot2c_f32_bf16 v{s2}, v{x+i}, v{x+i}")
            l.append(f"v_dot2c_f32_bf16 v{s1}, v{x+i}, v{ones}")
            l.append(f"v_dot2c_f32_bf16 v{cs}, v{w+i}, v{ones}")
        return l
    g.run(extra)
    t = g.t
    e("s_lshr_b32 s37, s34, 1")
    e("s_and_b32 s38, s34, 1")
    e("s_nop 3")
    e(f"v_mov_b32 v{dm}, v{cs}")
    e(f"v_and_b32 v{t[0]}, 31, v1")
    e(f"v_lshrrev_b32 v{t[1]}, 5, v1")
    e(f"v_permlane32_swap_b32 v{s1}, v{s2}")
    e(f"v_permlane32_swap_b32 v{dm}, v{cs}")
    e("s_lshl_b32 s39, s37, 8")
    e("s_lshl_b32 s64, s38, 7")
    e(f"v_add_f32 v{s1}, v{s1}, v{s2}")
    e(f"v_add_f32 v{cs}, v{dm}, v{cs}")
    e("s_add_u32 s39, s39, s64")
    e("s_lshl_b32 s64, s38, 8")
    e("s_lshl_b32 s65, s37, 7")
    e("s_add_u32 s64, s64, s65")
    e(f"s_add_u32 s39, s39, {STAT}")
    e(f"s_add_u32 s64, s64, {STAT + 1024}")
    e(f"v_lshlrev_b32 v{t[2]}, 2, v{t[0]}")
    e(f"v_lshl_add_u32 v{t[3]}, v{t[1]}, 9, v{t[2]}")
    e(f"v_add_u32 v{t[3]}, s39, v{t[3]}")
    e(f"ds_write_b32 v{t[3]}, v{s1}")
    e(f"v_add_u32 v{t[4]}, s64, v{t[2]}")
    e(f"ds_write_b32 v{t[4]}, v{cs}")
    e("s_waitcnt lgkmcnt(0)")
    e("s_barrier")
    csr = [va.a(16, 4), va.a(16, 4)]
    mean = [va.a(2, 2), va.a(2, 2)]
    rstd = [va.a(2, 2), va.a(2, 2)]
    vO = [va.a(), va.a()]
    for mi in range(2):
        e(f"s_xor_b32 s64, s38, {mi}")
        e("s_lshl_b32 s64, s64, 5")
        e("s_lshl_b32 s65, s37, 6")
        e("s_add_u32 s64, s64, s65")
        e("s_lshl_b32 s65, s64, 2")
        e(f"s_add_u32 s65, s65, {STAT}")
        e(f"v_add_u32 v{t[3]}, s65, v{t[2]}")
        e(f"ds_read_b32 v{mean[mi]}, v{t[3]}")
        e(f"ds_read_b32 v{rstd[mi]}, v{t[3]} offset:512")
        e("s_add_u32 s64, s64, s32")
        e(f"v_add_u32 v{vO[mi]}, s64, v{t[0]}")
        e(f"v_lshlrev_b32 v{vO[mi]}, 10, v{vO[mi]}")
        e(f"v_lshl_add_u32 v{vO[mi]}, v{t[1]}, 4, v{vO[mi]}")
        e("s_lshl_b32 s64, s38, 6")
        e("s_add_u32 s64, s64, s33")
        e("s_lshl_b32 s64, s64, 1")
        e(f"v_add_u32 v{vO[mi]}, s64, v{vO[mi]}")
    for ni in range(2):
        e(f"s_xor_b32 s64, s37, {ni}")
        e("s_lshl_b32 s64, s64, 7")
        e("s_lshl_b32 s65, s38, 8")
        e("s_add_u32 s64, s64, s65")
        e(f"s_add_u32 s64, s64, {STAT + 1024}")
        e(f"v_lshlrev_b32 v{t[3]}, 4, v{t[1]}")
        e(f"v_add_u32 v{t[3]}, s64, v{t[3]}")
        for q in range(4):
            e(f"ds_read_b128 {vr(csr[ni] + 4 * q, 4)}, v{t[3]} offset:{q * 32}")
        e(f"s_xor_b32 s{68 + ni}, s37, {ni}")
        e(f"s_lshl_b32 s{68 + ni}, s{68 + ni}, 6")
    e("s_waitcnt lgkmcnt(0)")
    for mi in range(2):
        rstd_from_sums(k, mean[mi], rstd[mi])
    ln_gelu_store(k, g, va, csr, mean, rstd, vO, (68, 69), srdO)
    return STAT + 2048

def gen_g1():
    k = K("g1_kernel")
    e = k.e
    head(k, 256)
    e("s_and_b32 s37, s35, 3")
    e("s_lshl_b32 s37, s37, 2")
    e("s_and_b32 s38, s36, 3")
    e("s_add_u32 s70, s37, s38")
    e("s_lshr_b32 s37, s35, 2")
    e("s_lshl_b32 s37, s37, 3")
    e("s_lshr_b32 s38, s36, 2")
    e("s_add_u32 s71, s37, s38")
    e("s_lshl_b32 s32, s70, 7")
    e("s_and_b32 s72, s71, 3")
    e("s_lshr_b32 s73, s71, 2")
    e("s_and_b32 s37, s36, 3")
    e("s_lshl_b32 s37, s37, 1")
    e("s_add_u32 s79, s37, s38")
    e("s_and_b32 s79, s79, 7")
    e("s_waitcnt lgkmcnt(0)")
    k.stamp(1)
    srd(k, 4, P_X, 0, MB2)
    e("s_cmp_eq_u32 s73, 3")
    e(f"s_cbranch_scc1 L_g1_w1")
    srd(k, 8, P_WQKV, 0, 512 * 1536 * 2)
    e("s_lshl_b32 s33, s71, 7")
    e("s_lshl_b32 s37, s73, 21")
    e(f"s_add_u32 s12, s{P_WS}, s37")
    e(f"s_addc_u32 s13, s{P_WS+1}, 0")
    e(f"s_mov_b32 s14, {hx(MB2)}")
    e("s_mov_b32 s15, 0x20000")
    srd(k, 16, P_WS, WS_KN, 4096)
    e("s_lshr_b32 s37, s34, 1")
    e("s_and_b32 s38, s34, 1")
    e("s_lshl_b32 s74, s72, 19")
    e("s_lshl_b32 s39, s38, 18")
    e("s_add_u32 s74, s74, s39")
    e("s_lshl_b32 s39, s70, 12")
    e("s_add_u32 s74, s74, s39")
    e("s_lshl_b32 s39, s37, 11")
    e("s_add_u32 s74, s74, s39")
    e("s_cmp_eq_u32 s73, 2")
    e("s_cbranch_scc1 L_g1_v")
    maxv = 0
    lds = 0
    va = VAlloc(4)
    g = Gemm(k, va, 128, 128, 2, 2, 4, 1, [Seg(512, 4, 1024, 8, 3072, rot=79)], False, True, **GK)
    g.alloc()
    g.setup_dma()
    g.prologue_dma(NPRO)
    g.setup_reads()
    g.run()
    lds = max(lds, g.lds_bytes)
    vS = va.a()
    pk = [va.a(4, 4), va.a(4, 4)]
    nr = va.a(8, 4)
    e(f"v_lshlrev_b32 v{vS}, 4, v1")
    e("s_nop 7")
    e("s_nop 3")
    e("s_cmp_eq_u32 s73, 1")
    e("s_cbranch_scc1 L_g1_kepi")
    cnt = 0
    for ni in range(2):
        for hf in range(2):
            e(f"s_add_u32 s75, s74, {hx((ni * 2 + hf) << 16)}")
            for mi in range(2):
                a = g.acc[0][mi][ni] + hf * 8
                for i in range(8):
                    e(f"v_mul_f32 v{a+i}, {fl(QSCALE)}, v{a+i}")
                p = pk[cnt & 1]; cnt += 1
                pack8(k, a, p)
                e(f"buffer_store_dwordx4 {vr(p, 4)}, v{vS}, s[12:15], s75 offen offset:{mi * 1024}{sc('q')}")
    e("s_branch L_g1_pf")
    k.label("L_g1_kepi")
    for ni in range(2):
        for hf in range(2):
            e(f"s_add_u32 s75, s74, {hx((ni * 2 + hf) << 16)}")
            hh = ni * 2 + hf
            for mi in range(2):
                a = g.acc[0][mi][ni] + hf * 8
                p = pk[cnt & 1]; cnt += 1
                pack8(k, a, p)
                e(f"buffer_store_dwordx4 {vr(p, 4)}, v{vS}, s[12:15], s75 offen offset:{mi * 1024}{sc('q')}")
                n = nr + mi * 4 + hh
                e(f"v_mul_f32 v{n}, v{a}, v{a}")
                for i in range(1, 8):
                    e(f"v_fmac_f32 v{n}, v{a+i}, v{a+i}")
    e("s_nop 1")
    for hh in range(4):
        e(f"v_permlane32_swap_b32 v{nr+hh}, v{nr+4+hh}")
    e("s_nop 1")
    for hh in range(4):
        e(f"v_add_f32 v{nr+hh}, v{nr+hh}, v{nr+4+hh}")
    for dpp in DPP_MAX:
        e("s_nop 1")
        for hh in range(4):
            e(f"v_max_f32_dpp v{nr+hh}, v{nr+hh}, v{nr+hh} {dpp}")
    e("s_lshl_b32 s75, s70, 1")
    e("s_add_u32 s75, s75, s37")
    e("s_lshl_b32 s75, s75, 7")
    e("s_lshl_b32 s39, s72, 5")
    e("s_add_u32 s75, s75, s39")
    e("s_lshl_b32 s39, s38, 4")
    e("s_add_u32 s75, s75, s39")
    e(f"v_mov_b32 v{vS}, 0")
    e("s_mov_b32 s66, 0")
    e("s_mov_b32 s67, 0x80000000")
    e("s_mov_b64 exec, s[66:67]")
    e(f"buffer_store_dwordx4 {vr(nr, 4)}, v{vS}, s[16:19], s75 offen")
    e("s_branch L_g1_pf")
    maxv = max(maxv, va.n)
    k.label("L_g1_v")
    k.vm = []
    va = VAlloc(4)
    g = Gemm(k, va, 128, 128, 2, 2, 4, 1, [Seg(512, 4, 1024, 8, 3072, rot=79)], False, False, **GK)
    g.alloc()
    g.setup_dma()
    g.prologue_dma(NPRO)
    g.setup_reads()
    g.run()
    vS = va.a()
    tt = va.a()
    pk = [va.a(4, 4), va.a(4, 4)]
    e(f"v_bfe_u32 v{vS}, v1, 4, 1")
    e(f"v_lshlrev_b32 v{vS}, 16, v{vS}")
    e(f"v_lshrrev_b32 v{tt}, 5, v1")
    e(f"v_lshl_add_u32 v{vS}, v{tt}, 8, v{vS}")
    e(f"v_and_b32 v{tt}, 15, v1")
    e(f"v_lshl_add_u32 v{vS}, v{tt}, 4, v{vS}")
    e("s_nop 7")
    cnt = 0
    for ni in range(2):
        e(f"s_add_u32 s75, s74, {hx((ni * 2) << 16)}")
        for mi in range(2):
            for tq in range(2):
                a = g.acc[0][mi][ni] + tq * 8
                p = pk[cnt & 1]; cnt += 1
                pack8(k, a, p)
                e(f"buffer_store_dwordx4 {vr(p, 4)}, v{vS}, s[12:15], s75 offen offset:{mi * 1024 + tq * 512}{sc('q')}")
    e("s_branch L_g1_pf")
    maxv = max(maxv, va.n)
    k.label("L_g1_w1")
    k.vm = []
    srd(k, 8, P_W1, 0, 512 * 512 * 2)
    srd(k, 12, P_WS, WS_H, MB2)
    e("s_lshl_b32 s33, s72, 7")
    va = VAlloc(4)
    l2 = w1_path(k, va, 4, 8, 12)
    lds = max(lds, l2)
    maxv = max(maxv, va.n)
    k.label("L_g1_pf")
    e("s_mov_b64 exec, -1")
    srd(k, 4, P_W2, 0, 512 * 512 * 2)
    e("s_lshl_b32 s64, s36, 2")
    e("s_add_u32 s64, s64, s34")
    e("s_lshl_b32 s64, s64, 12")
    e("v_lshlrev_b32 v3, 4, v1")
    prefetch(k, 4, 3, 4, 64, 4)
    tail(k)
    return k, maxv, lds

def tile64_ids(k):
    e = k.e
    e("s_lshl_b32 s37, s35, 2")
    e("s_and_b32 s38, s36, 3")
    e("s_add_u32 s70, s37, s38")
    e("s_lshr_b32 s71, s36, 2")
    e("s_lshl_b32 s32, s70, 6")
    e("s_lshl_b32 s33, s71, 6")
    e("s_lshl_b32 s37, s38, 1")
    e("s_add_u32 s79, s37, s71")
    e("s_and_b32 s79, s79, 7")

def g2_role(k, va, NS, NB):
    e = k.e
    e("s_cmp_ge_u32 s34, 4")
    e(f"s_cbranch_scc1 L_{k.name}_end")
    tile64_ids(k)
    e("s_waitcnt lgkmcnt(0)")
    k.stamp(1)
    srd(k, 4, P_WS, WS_H, MB2)
    srd(k, 8, P_W2, 0, 512 * 512 * 2)
    srd(k, 12, P_WS, WS_X1, MB2)
    srd(k, 16, P_X, 0, MB2)
    srd(k, 20, P_WS, WS_PST, 2048 * 128)
    srd(k, 24, P_WS, WS_PG, 2048 * 64)
    srd(k, 64, P_GATE, 0, 1024)
    segs = [Seg(512, 4, 1024, 8, 1024, rot=79, dynshift=True)]
    g = Gemm(k, va, 64, 64, 2, 2, NS, 1, segs, True, True, **GK)
    g.alloc()
    g.setup_dma()
    g.prologue_dma(NPRO)
    vT, vK, t0, t1, t2 = va.a(), va.a(), va.a(), va.a(), va.a()
    ss, sq, sg, sg2 = va.a(), va.a(), va.a(), va.a()
    xr = va.a(8, 4)
    gr = va.a(8, 4)
    pk = [va.a(4, 4), va.a(4, 4)]
    e("s_lshr_b32 s37, s34, 1")
    e("s_and_b32 s38, s34, 1")
    e("s_lshl_b32 s39, s37, 5")
    e("s_add_u32 s39, s39, s32")
    e(f"v_and_b32 v{vK}, 31, v1")
    e(f"v_add_u32 v{vK}, s39, v{vK}")
    e(f"v_lshlrev_b32 v{vT}, 10, v{vK}")
    e("s_lshl_b32 s39, s38, 5")
    e("s_add_u32 s39, s39, s33")
    e("s_lshl_b32 s39, s39, 1")
    e(f"v_add_u32 v{vT}, s39, v{vT}")
    e(f"v_lshrrev_b32 v{t1}, 5, v1")
    e(f"v_lshl_add_u32 v{t0}, v{t1}, 3, v{vT}")
    e(f"v_lshl_add_u32 v{vT}, v{t1}, 4, v{vT}")
    e(f"v_lshlrev_b32 v{t2}, 3, v{t1}")
    for q in range(4):
        k.vmem(f"buffer_load_dwordx2 {vr(xr + 2 * q, 2)}, v{t0}, s[16:19], 0 offen offset:{q * 16}", "xres")
    for q in range(4):
        k.vmem(f"buffer_load_dwordx2 {vr(gr + 2 * q, 2)}, v{t2}, s[64:67], s39 offen offset:{q * 16}", "xres")
    g.setup_reads()
    g.run()
    k.wait_vm("xres")
    e(f"v_mov_b32 v{ss}, 0")
    e(f"v_mov_b32 v{sq}, 0")
    e(f"v_mov_b32 v{sg}, 0")
    e(f"v_mov_b32 v{sg2}, 0")
    e("s_nop 7")
    a = g.acc[0][0][0]
    for q in range(4):
        for d in range(2):
            i = 4 * q + 2 * d
            x_, g_ = xr + 2 * q + d, gr + 2 * q + d
            e(f"v_lshlrev_b32 v{t0}, 16, v{x_}")
            e(f"v_and_b32 v{t1}, 0xffff0000, v{x_}")
            e(f"v_lshlrev_b32 v{t2}, 16, v{g_}")
            e(f"v_and_b32 v{g_}, 0xffff0000, v{g_}")
            e(f"v_add_f32 v{a+i}, v{a+i}, v{t0}")
            e(f"v_add_f32 v{a+i+1}, v{a+i+1}, v{t1}")
            e(f"v_fmac_f32 v{sg}, v{t0}, v{t2}")
            e(f"v_fmac_f32 v{sg2}, v{t1}, v{g_}")
            e(f"v_add_f32 v{ss}, v{ss}, v{a+i}")
            e(f"v_fmac_f32 v{sq}, v{a+i}, v{a+i}")
            e(f"v_add_f32 v{ss}, v{ss}, v{a+i+1}")
            e(f"v_fmac_f32 v{sq}, v{a+i+1}, v{a+i+1}")
    for hf in range(2):
        pack8(k, a + hf * 8, pk[hf])
        e(f"buffer_store_dwordx4 {vr(pk[hf], 4)}, v{vT}, s[12:15], 0 offen offset:{hf * 32}{sc('x')}")
    e(f"v_add_f32 v{sg}, v{sg}, v{sg2}")
    e(f"v_lshrrev_b32 v{t1}, 5, v1")
    e(f"v_mov_b32 v{sg2}, v{sg}")
    e(f"v_and_b32 v{t0}, 31, v1")
    e(f"v_lshlrev_b32 v{t2}, 4, v{t0}")
    e(f"v_lshl_add_u32 v{t0}, v{t1}, 2, v{t2}")
    e(f"v_permlane32_swap_b32 v{ss}, v{sq}")
    e(f"v_permlane32_swap_b32 v{sg}, v{sg2}")
    e("s_lshl_b32 s39, s70, 1")
    e("s_add_u32 s39, s39, s37")
    e("s_lshl_b32 s68, s39, 3")
    e("s_add_u32 s68, s68, s71")
    e("s_lshl_b32 s68, s68, 9")
    e("s_lshl_b32 s69, s38, 3")
    e("s_add_u32 s68, s68, s69")
    e("s_lshl_b32 s69, s39, 2")
    e("s_lshr_b32 s39, s71, 1")
    e("s_add_u32 s69, s69, s39")
    e("s_lshl_b32 s69, s69, 9")
    e("s_and_b32 s39, s71, 1")
    e("s_lshl_b32 s39, s39, 1")
    e("s_add_u32 s39, s39, s38")
    e("s_lshl_b32 s39, s39, 2")
    e("s_add_u32 s69, s69, s39")
    e(f"v_add_f32 v{ss}, v{ss}, v{sq}")
    e(f"v_add_f32 v{sg}, v{sg}, v{sg2}")
    e(f"buffer_store_dword v{ss}, v{t0}, s[20:23], s68 offen")
    e(f"buffer_store_dword v{sg}, v{t2}, s[24:27], s69 offen")
    srd(k, 8, P_W3, 0, 512 * 1792 * 2)
    srd(k, 4, P_WS, WS_K, 2 * MB2)
    e("s_lshl_b32 s64, s36, 2")
    e("s_add_u32 s64, s64, s34")
    e("s_mul_i32 s65, s64, 14336")
    e(f"v_lshlrev_b32 v{t0}, 4, v1")
    prefetch(k, 8, t0, g.X[0][0], 65, 14)
    if NB:
        e("s_lshr_b32 s65, s64, 5")
        e("s_lshl_b32 s66, s35, 2")
        e("s_add_u32 s65, s65, s66")
        e("s_lshl_b32 s65, s65, 16")
        e("s_and_b32 s66, s64, 31")
        e("s_lshl_b32 s66, s66, 10")
        e("s_add_u32 s65, s65, s66")
        e(f"s_add_u32 s65, s65, {(64 - NB) * 1024}")
        e(f"s_add_u32 s66, s65, {MB2}")
        for rep in range((NB + 31) // 32):
            e(f"buffer_load_dwordx4 {vr(g.X[0][0], 4)}, v{t0}, s[4:7], s65 offen")
            e(f"buffer_load_dwordx4 {vr(g.X[0][0], 4)}, v{t0}, s[4:7], s66 offen")
            if (rep + 1) * 32 < NB:
                e("s_add_u32 s65, s65, 32768")
                e("s_add_u32 s66, s66, 32768")
    e("s_lshl_b32 s39, s36, 3")
    e("s_add_u32 s39, s39, s35")
    e("s_cmp_ge_u32 s39, 28")
    e(f"s_cbranch_scc1 L_{k.name}_fin")
    srd(k, 12, P_WS, WS_CS3, 1792 * 4)
    ld = va.a(32, 4)
    ac = va.a(8, 4)
    assert va.n <= 128
    e(f"v_lshrrev_b32 v{t0}, 3, v0")
    e(f"v_mul_u32_u24 v{t0}, 3584, v{t0}")
    e(f"v_and_b32 v{t1}, 7, v0")
    e(f"v_lshl_add_u32 v{t0}, v{t1}, 4, v{t0}")
    e("s_lshl_b32 s68, s39, 7")
    for i in range(8):
        e(f"v_mov_b32 v{ac + i}, 0")
    for bt in range(2):
        for j in range(8):
            e(f"buffer_load_dwordx4 {vr(ld + 4 * j, 4)}, v{t0}, s[8:11], s68 offen")
            e(f"s_add_u32 s68, s68, {32 * 3584}")
        for j in range(8):
            e(f"s_waitcnt vmcnt({7 - j})")
            for d in range(4):
                e(f"v_lshlrev_b32 v{t1}, 16, v{ld + 4 * j + d}")
                e(f"v_and_b32 v{t2}, 0xffff0000, v{ld + 4 * j + d}")
                e(f"v_add_f32 v{ac + 2 * d}, v{ac + 2 * d}, v{t1}")
                e(f"v_add_f32 v{ac + 2 * d + 1}, v{ac + 2 * d + 1}, v{t2}")
    e("s_barrier")
    e(f"v_lshlrev_b32 v{t0}, 5, v0")
    e(f"ds_write_b128 v{t0}, {vr(ac, 4)}")
    e(f"ds_write_b128 v{t0}, {vr(ac + 4, 4)} offset:16")
    e("s_waitcnt lgkmcnt(0)")
    e("s_barrier")
    e("s_cmp_lg_u32 s34, 0")
    e(f"s_cbranch_scc1 L_{k.name}_fin")
    e(f"v_lshlrev_b32 v{t0}, 2, v1")
    for r in range(32):
        e(f"ds_read_b32 v{ld + r}, v{t0} offset:{r * 256}")
        if r % 8 == 7:
            e("s_waitcnt lgkmcnt(0)")
    for r in range(1, 32):
        e(f"v_add_f32 v{ld}, v{ld}, v{ld + r}")
    e("s_lshl_b32 s68, s39, 8")
    e(f"buffer_store_dword v{ld}, v{t0}, s[12:15], s68 offen")
    e(f"s_branch L_{k.name}_fin")
    return max(g.lds_bytes, 8192)

def g3_role(k, va, NS, BK):
    e = k.e
    e("s_lshl_b32 s37, s35, 1")
    e("s_and_b32 s38, s36, 1")
    e("s_add_u32 s70, s37, s38")
    e("s_lshr_b32 s71, s36, 1")
    e("s_lshl_b32 s32, s70, 7")
    e("s_lshl_b32 s33, s71, 7")
    e("s_lshl_b32 s37, s38, 2")
    e("s_add_u32 s79, s37, s71")
    e("s_and_b32 s79, s79, 7")
    if BK == 32:
        e("s_lshl_b32 s79, s79, 1")
    e("s_waitcnt lgkmcnt(0)")
    k.stamp(1)
    e("s_cmp_ge_u32 s36, 28")
    e(f"s_cbranch_scc1 L_{k.name}_pf")
    srd(k, 4, P_WS, WS_X1, MB2)
    srd(k, 8, P_W3, 0, 512 * 1792 * 2)
    srd(k, 12, P_WS, WS_H3, H3_BYTES)
    srd(k, 16, P_WS, WS_PST, 2048 * 128)
    srd(k, 20, P_WS, WS_CS3, 1792 * 4)
    g = Gemm(k, va, 128, 128, 4, 2, NS, 1, [Seg(512, 4, 1024, 8, 3584, rot=79)], True, True, BK=BK, **GK)
    g.alloc()
    g.setup_dma()
    g.prologue_dma(NPRO)
    g.setup_reads()
    csr = [va.a(16, 4), va.a(16, 4)]
    ps = va.a(16, 4)
    mean = [va.a(2, 2)]
    rstd = [va.a(2, 2)]
    vO = [va.a()]
    t0, t1, vP, vC = g.t[0:4]
    e("s_lshr_b32 s37, s34, 1")
    e("s_and_b32 s38, s34, 1")
    e("s_lshl_b32 s39, s37, 5")
    e("s_add_u32 s39, s39, s32")
    e(f"v_and_b32 v{t0}, 31, v1")
    e(f"v_lshlrev_b32 v{vP}, 4, v{t0}")
    e(f"v_add_u32 v{t0}, s39, v{t0}")
    e(f"v_lshrrev_b32 v{t1}, 5, v1")
    e(f"v_lshl_add_u32 v{vP}, v{t1}, 11, v{vP}")
    e("s_lshr_b32 s66, s39, 5")
    e("s_lshl_b32 s66, s66, 12")
    e("s_lshl_b32 s64, s38, 6")
    e("s_add_u32 s64, s64, s33")
    e("s_lshl_b32 s72, s64, 2")
    e(f"v_lshlrev_b32 v{vC}, 4, v{t1}")
    pre = []
    for c in range(4):
        pre.append(f"buffer_load_dwordx4 {vr(ps + 4 * c, 4)}, v{vP}, s[16:19], s66 offen offset:{c * 512}")
    for ni in range(2):
        for q in range(4):
            pre.append(f"buffer_load_dwordx4 {vr(csr[ni] + 4 * q, 4)}, v{vC}, s[20:23], s72 offen offset:{ni * 128 + q * 32}")
    def extra(st, step, buf, gs):
        if gs >= 8 and pre:
            k.vmem(pre.pop(0), "pre")
        return []
    e("s_movk_i32 s65, 3584")
    e(f"v_mul_lo_u32 v{vO[0]}, v{t0}, s65")
    e(f"v_lshl_add_u32 v{vO[0]}, v{t1}, 4, v{vO[0]}")
    e("s_lshl_b32 s64, s64, 1")
    e(f"v_add_u32 v{vO[0]}, s64, v{vO[0]}")
    e("s_mov_b32 s68, 0")
    e("s_mov_b32 s69, 64")
    def pf34():
        srd(k, 4, P_W4, 0, 1792 * 512 * 2)
        srd(k, 8, P_WO, 0, 512 * 512 * 2)
        e("s_lshl_b32 s64, s36, 3")
        e("s_add_u32 s64, s64, s34")
        e("s_mul_i32 s65, s64, 7168")
        e("s_lshl_b32 s66, s64, 11")
        e(f"v_lshlrev_b32 v{t0}, 4, v1")
        prefetch(k, 4, t0, pfd, 65, 7)
        prefetch(k, 8, t0, pfd, 66, 2)
    pfd = ps
    g.run(extra)
    assert not pre
    e("s_waitcnt vmcnt(0)")
    e(f"s_setprio {os.environ.get('EPRIO', '1')}")
    e(f"v_add_f32 v{mean[0]}, v{ps}, v{ps + 2}")
    e(f"v_add_f32 v{rstd[0]}, v{ps + 1}, v{ps + 3}")
    for c in range(2, 8):
        e(f"v_add_f32 v{mean[0]}, v{mean[0]}, v{ps + 2 * c}")
        e(f"v_add_f32 v{rstd[0]}, v{rstd[0]}, v{ps + 2 * c + 1}")
    pf34()
    e(f"v_mov_b32 v{mean[0] + 1}, v{mean[0]}")
    e(f"v_mov_b32 v{rstd[0] + 1}, v{rstd[0]}")
    e("s_nop 1")
    e(f"v_permlane32_swap_b32 v{mean[0]}, v{mean[0] + 1}")
    e(f"v_permlane32_swap_b32 v{rstd[0]}, v{rstd[0] + 1}")
    e("s_nop 1")
    e(f"v_add_f32 v{mean[0]}, v{mean[0]}, v{mean[0] + 1}")
    e(f"v_add_f32 v{rstd[0]}, v{rstd[0]}, v{rstd[0] + 1}")
    rstd_from_sums(k, mean[0], rstd[0])
    assert g.W[1][1] + 4 - g.X[0][0] == 24
    ln_gelu_store(k, g, va, csr, mean, rstd, vO, (68, 69), 12, scratch=g.X[0][0], cls='3')
    e(f"s_branch L_{k.name}_fin")
    k.label(f"L_{k.name}_pf")
    pf34()
    e(f"s_branch L_{k.name}_fin")
    return g.lds_bytes

def gen_fused(name, attn_args, gemm_fn):
    k = K(name)
    e = k.e
    head(k, 512, fused=True)
    e("s_cmp_eq_u32 s33, 0")
    e(f"s_cbranch_scc1 L_{name}_attn")
    if os.environ.get("NOGEMM"):
        e(f"s_branch L_{name}_end")
    e(f"s_setprio {os.environ.get('GPRIO', '1')}")
    va = VAlloc(4)
    l1 = gemm_fn(k, va)
    n1 = va.n
    k.label(f"L_{name}_attn")
    k.vm = []
    va = VAlloc(4)
    l2 = attn_role(k, va, *attn_args, px=name + "_a")
    tail(k)
    return k, max(n1, va.n), max(l1, l2)

def gen_g4():
    k = K("g4_kernel")
    e = k.e
    head(k, 256)
    tile64_ids(k)
    e("s_waitcnt lgkmcnt(0)")
    k.stamp(1)
    srd(k, 4, P_WS, WS_H3, H3_BYTES)
    srd(k, 8, P_W4, 0, 1792 * 512 * 2)
    srd(k, 12, P_OUT, 0, MB2)
    srd(k, 16, P_WS, WS_X1, MB2)
    srd(k, 20, P_WS, WS_O, MB2)
    srd(k, 24, P_WO, 0, 512 * 512 * 2)
    srd(k, 64, P_WS, WS_PG, 2048 * 64)
    va = VAlloc(4)
    e("s_mul_i32 s80, s79, 7")
    e("s_lshr_b32 s80, s80, 2")
    e("s_lshr_b32 s81, s79, 1")
    segs = [Seg(1792, 4, 3584, 8, 1024, acc=0, rot=80), Seg(512, 20, 1024, 24, 1024, acc=1, rot=81)]
    g = Gemm(k, va, 64, 64, 2, 2, 4, 2, segs, True, True, **GK)
    g.alloc()
    g.setup_dma()
    g.prologue_dma(NPRO)
    vT, vN, t0, t1, vg, vg1 = va.a(), va.a(), va.a(), va.a(), va.a(), va.a()
    xr = va.a(8, 4)
    pg = va.a(8, 4)
    pk = va.a(8, 4)
    e("s_lshr_b32 s37, s34, 1")
    e("s_and_b32 s38, s34, 1")
    e("s_lshl_b32 s39, s37, 5")
    e("s_add_u32 s39, s39, s32")
    e(f"v_and_b32 v{t0}, 31, v1")
    e(f"v_add_u32 v{t0}, s39, v{t0}")
    e(f"v_lshlrev_b32 v{vT}, 10, v{t0}")
    e(f"v_lshrrev_b32 v{t1}, 5, v1")
    e(f"v_and_b32 v{t0}, 31, v1")
    e(f"v_lshlrev_b32 v{t0}, 4, v{t0}")
    e(f"v_lshl_add_u32 v{t0}, v{t1}, 10, v{t0}")
    e("s_lshr_b32 s39, s39, 5")
    e("s_lshl_b32 s39, s39, 11")
    for c in range(2):
        k.vmem(f"buffer_load_dwordx4 {vr(pg + 4 * c, 4)}, v{t0}, s[64:67], s39 offen offset:{c * 512}", "epi")
    e("s_lshl_b32 s39, s38, 5")
    e("s_add_u32 s39, s39, s33")
    e("s_lshl_b32 s39, s39, 1")
    e(f"v_add_u32 v{vT}, s39, v{vT}")
    e(f"v_lshl_add_u32 v{vN}, v{t1}, 3, v{vT}")
    e(f"v_lshl_add_u32 v{vT}, v{t1}, 4, v{vT}")
    for hf in range(2):
        k.vmem(f"buffer_load_dwordx4 {vr(xr + 4 * hf, 4)}, v{vT}, s[16:19], 0 offen offset:{hf * 32}", "epi")
    g.setup_reads()
    g.run()
    e("s_waitcnt vmcnt(0)")
    for i in range(1, 8):
        e(f"v_add_f32 v{pg}, v{pg}, v{pg + i}")
    e(f"v_mov_b32 v{vg}, v{pg}")
    e("s_nop 1")
    e(f"v_permlane32_swap_b32 v{vg}, v{pg}")
    e("s_nop 1")
    e(f"v_add_f32 v{vg}, v{vg}, v{pg}")
    e(f"v_mul_f32 v{vg}, {fl(-LOG2E)}, v{vg}")
    e(f"v_exp_f32 v{vg}, v{vg}")
    e("s_nop 0")
    e(f"v_add_f32 v{vg}, 1.0, v{vg}")
    e(f"v_rcp_f32 v{vg}, v{vg}")
    e("s_nop 0")
    e(f"v_sub_f32 v{vg1}, 1.0, v{vg}")
    b = g.acc[0][0][0]
    a = g.acc[1][0][0]
    for i2 in range(8):
        i = 2 * i2
        e(f"v_lshlrev_b32 v{t0}, 16, v{xr + i2}")
        e(f"v_and_b32 v{t1}, 0xffff0000, v{xr + i2}")
        e(f"v_add_f32 v{b+i}, v{b+i}, v{t0}")
        e(f"v_add_f32 v{b+i+1}, v{b+i+1}, v{t1}")
        e(f"v_mul_f32 v{b+i}, v{b+i}, v{vg1}")
        e(f"v_mul_f32 v{b+i+1}, v{b+i+1}, v{vg1}")
        e(f"v_fmac_f32 v{b+i}, v{a+i}, v{vg}")
        e(f"v_fmac_f32 v{b+i+1}, v{a+i+1}, v{vg}")
        e(f"v_cvt_pk_bf16_f32 v{pk + i2}, v{b+i}, v{b+i+1}")
    for q in range(4):
        e(f"buffer_store_dwordx2 {vr(pk + 2 * q, 2)}, v{vN}, s[12:15], 0 offen offset:{q * 16}{sc('z')}")
    tail(k)
    return k, va.n, g.lds_bytes

def build():
    NA = int(os.environ.get("NA", "32"))
    ks = [gen_g1(),
          gen_fused("f2_kernel", (0, NA, True, False), lambda k, va: g2_role(k, va, 4, 64 - NA)),
          gen_fused("f3_kernel", (NA, 64 - NA, False, True), lambda k, va: g3_role(k, va, 4, 32)),
          gen_g4()]
    grids = {"g1_kernel": 256, "f2_kernel": 512, "f3_kernel": 512, "g4_kernel": 256}
    hdr = open("gated_mix__mha_block__mixer_s_mlp__prompt.s.ref").read().split("; Override")[0]
    out = hdr
    for k, nv, lds in ks:
        out += f"; @launch kernel={k.name} grid=({grids[k.name]},1,1) block=({512 if k.name[0] == 'f' else 256},1,1) lds={lds}\n"
    out += '.amdgcn_target "amdgcn-amd-amdhsa--gfx950"\n'
    for k, nv, lds in ks:
        assert nv <= (128 if k.name[0] == 'f' else 256), (k.name, nv)
        out += kernel_text(k, nv)
    return out

if __name__ == "__main__":
    K.STAMP = bool(os.environ.get("STAMP"))
    K.MODE = os.environ.get("STAMPMODE", "")
    dst = sys.argv[1] if len(sys.argv) > 1 else "gated_mix__mha_block__mixer_s_mlp__prompt.s"
    open(dst, "w").write(build())
```

```python
import struct

def f2u(x):
    return struct.unpack("<I", struct.pack("<f", x))[0]

def hx(x):
    return "0x%x" % (x & 0xffffffff)

def fl(x):
    return hx(f2u(x))

class K:
    def __init__(self, name):
        self.name = name
        self.L = []
        self.vm = []
        self.uid = 0
    def e(self, s):
        self.L.append("    " + s)
    def c(self, s):
        self.L.append("    ; " + s)
    def label(self, l):
        self.L.append(l + ":")
    def newlabel(self, base):
        self.uid += 1
        return f"L_{self.name}_{base}_{self.uid}"
    def vmem(self, s, tag):
        self.e(s)
        self.vm.append(tag)
    def wait_vm(self, tag, extra=""):
        idx = [i for i, t in enumerate(self.vm) if t == tag]
        assert idx, tag
        n = len(self.vm) - 1 - max(idx)
        assert n <= 63, n
        self.e(f"s_waitcnt vmcnt({n}){extra}")
    def vm_count_after(self, tag):
        idx = [i for i, t in enumerate(self.vm) if t == tag]
        assert idx, tag
        return len(self.vm) - 1 - max(idx)
    STAMP = False
    MODE = ""
    def stamp(self, i, mode=""):
        if not K.STAMP:
            return
        if i >= 2 and mode != K.MODE:
            return
        if i == 0:
            self.e("s_memrealtime s[100:101]")
            self.e("s_waitcnt lgkmcnt(0)")
            self.e("s_mov_b32 s98, s100")
            for j in range(1, 12):
                self.e(f"s_mov_b32 s{84+j}, 0")
        self.e("s_memtime s[100:101]")
        self.e("s_waitcnt lgkmcnt(0)")
        self.e(f"s_mov_b32 s{84+i}, s100")
    def stamp_store(self, slot):
        if not K.STAMP:
            return
        e = self.e
        e("s_memrealtime s[100:101]")
        e("s_waitcnt lgkmcnt(0)")
        e(f"s_add_u32 s4, s62, {hx(0x2000000 + slot * 0x40000)}")
        e("s_addc_u32 s5, s63, 0")
        e("s_mov_b32 s6, 0x40000")
        e("s_mov_b32 s7, 0x20000")
        e("s_mov_b64 exec, 1")
        e("s_lshl_b32 s3, s2, 9")
        e("s_lshl_b32 s81, s34, 6")
        e("s_add_u32 s3, s3, s81")
        e("v_mov_b32 v1, 0")
        for i in range(12):
            e(f"v_mov_b32 v2, s{84+i}")
            e(f"buffer_store_dword v2, v1, s[4:7], s3 offen offset:{4*i}")
        e("v_mov_b32 v2, s98")
        e(f"buffer_store_dword v2, v1, s[4:7], s3 offen offset:48")
        e("s_getreg_b32 s81, hwreg(HW_REG_HW_ID)")
        e("v_mov_b32 v2, s81")
        e(f"buffer_store_dword v2, v1, s[4:7], s3 offen offset:52")
        e("s_getreg_b32 s81, hwreg(HW_REG_XCC_ID)")
        e("v_mov_b32 v2, s81")
        e(f"buffer_store_dword v2, v1, s[4:7], s3 offen offset:56")
        e("v_mov_b32 v2, s100")
        e(f"buffer_store_dword v2, v1, s[4:7], s3 offen offset:60")
    def text(self):
        return "\n".join(self.L) + "\n"

def vr(b, n):
    return f"v[{b}:{b+n-1}]" if n > 1 else f"v{b}"

def sr(b, n):
    return f"s[{b}:{b+n-1}]" if n > 1 else f"s{b}"

def kernel_text(k, nvgpr, nsgpr=None):
    nsgpr = nsgpr or (102 if K.STAMP else 96)
    acc = (nvgpr + 3) // 4 * 4
    return f"""
.text
.globl {k.name}
.p2align 8
.type {k.name},@function
{k.name}:
{k.text()}
.section .rodata,"a"
.p2align 6
.amdhsa_kernel {k.name}
  .amdhsa_next_free_vgpr {nvgpr}
  .amdhsa_next_free_sgpr {nsgpr}
  .amdhsa_accum_offset {acc}
  .amdhsa_group_segment_fixed_size 0
  .amdhsa_kernarg_size 96
  .amdhsa_user_sgpr_count 2
  .amdhsa_user_sgpr_kernarg_segment_ptr 1
  .amdhsa_system_sgpr_workgroup_id_x 1
.end_amdhsa_kernel
"""
```

```python
import os
from asmlib import *
from common import *

def attn_role(k, va, px):
    e = k.e
    CH, NCH, NT = 8, 8, 64
    RING = 4 * CH * 1024
    VOFF = RING
    e("s_setprio 3")
    e("s_lshl_b32 s37, s35, 2")
    e("s_lshr_b32 s38, s36, 3")
    e("s_add_u32 s70, s37, s38")
    e("s_and_b32 s71, s36, 7")
    Q = va.a(4, 4)
    C = va.a(16, 4)
    S = [va.a(16, 4), va.a(16, 4)]
    O = va.a(16, 4)
    P = va.a(8, 4)
    Kf = [va.a(4, 4), va.a(4, 4)]
    Vf = [[va.a(4, 4), va.a(4, 4)], [va.a(4, 4), va.a(4, 4)]]
    vD, vKa, vKn, vVa, vVl, vL16, t0, t1, t2 = [va.a() for _ in range(9)]
    vkn = t2
    e(f"v_lshlrev_b32 v{vKa}, 4, v1")
    e(f"v_lshlrev_b32 v{vL16}, 4, v1")
    e(f"v_add_u32 v{vKn}, {CH * 1024}, v{vKa}")
    e("s_lshl_b32 s72, s70, 16")
    e("s_lshl_b32 s73, s34, 10")
    e("s_waitcnt lgkmcnt(0)")
    k.stamp(1)
    srd(k, 4, P_WS, WS_K, MB2)
    srd(k, 8, P_WS, WS_V, MB2)
    srd(k, 12, P_WS, WS_Q, MB2)
    srd(k, 16, P_WS, WS_KN, 4096)
    srd(k, 20, P_WS, WS_O, MB2)
    e("s_add_u32 s74, s72, s73")
    e("s_mov_b32 s75, s73")
    def dma_chunk():
        e("s_mov_b32 m0, s75")
        e("s_nop 0")
        e(f"buffer_load_dwordx4 v{vL16}, s[4:7], s74 offen lds")
        e(f"s_add_u32 m0, s75, {VOFF}")
        e("s_nop 0")
        e(f"buffer_load_dwordx4 v{vL16}, s[8:11], s74 offen lds")
        e(f"s_add_u32 s74, s74, {CH * 1024}")
        e(f"s_add_u32 s75, s75, {CH * 1024}")
        e(f"s_and_b32 s75, s75, {RING - 1}")
    e("s_lshl_b32 s37, s71, 13")
    e("s_add_u32 s37, s37, s72")
    e("s_add_u32 s37, s37, s73")
    e(f"buffer_load_dwordx4 {vr(Q, 4)}, v{vL16}, s[12:15], s37 offen")
    e(f"v_and_b32 v{t0}, 31, v1")
    e(f"v_lshlrev_b32 v{t0}, 7, v{t0}")
    e("s_lshl_b32 s38, s70, 2")
    e(f"buffer_load_dword v{vkn}, v{t0}, s[16:19], s38 offen")
    dma_chunk()
    dma_chunk()
    e(f"v_lshrrev_b32 v{t0}, 5, v1")
    e(f"v_and_b32 v{t1}, 15, v1")
    e(f"v_lshlrev_b32 v{vVl}, 4, v{t1}")
    e(f"v_lshl_add_u32 v{vVl}, v{t0}, 8, v{vVl}")
    e(f"v_add_u32 v{vVa}, {VOFF}, v{vVl}")
    for b in range(2):
        for t in range(2):
            for i in range(4):
                e(f"v_mov_b32 v{Vf[b][t] + i}, 0x3f803f80")
    for i in range(8):
        e(f"v_mov_b32 v{P + i}, 0")
    for i in range(16):
        e(f"v_mov_b32 v{O + i}, 0")
    e("s_mov_b32 s76, 0xffff")
    e("s_mov_b32 s77, 0xffff")
    e(f"v_mov_b32 v{t0}, 0")
    e(f"s_waitcnt vmcnt(4)")
    for i in range(4):
        e(f"v_dot2c_f32_bf16 v{t0}, v{Q + i}, v{Q + i}")
    for dpp in DPP_MAX:
        e("s_nop 1")
        e(f"v_max_f32_dpp v{vkn}, v{vkn}, v{vkn} {dpp}")
    e(f"v_mov_b32 v{t1}, v{t0}")
    e("s_nop 1")
    e(f"v_readlane_b32 s78, v{vkn}, 63")
    e(f"v_permlane32_swap_b32 v{t0}, v{t1}")
    e("s_nop 1")
    e(f"v_add_f32 v{t0}, v{t0}, v{t1}")
    e(f"v_mul_f32 v{t0}, s78, v{t0}")
    e(f"v_sqrt_f32 v{t0}, v{t0}")
    e("s_nop 0")
    e(f"v_mul_f32 v{t0}, {fl(-1.01)}, v{t0}")
    for i in range(16):
        e(f"v_mov_b32 v{C + i}, v{t0}")
    e(f"s_waitcnt vmcnt(2)")
    e("s_barrier")
    k.stamp(2, "mid")
    e(f"ds_read_b128 {vr(Kf[0], 4)}, v{vKa}")
    e(f"ds_read_b128 {vr(Kf[1], 4)}, v{vKa} offset:1024")
    e("s_waitcnt lgkmcnt(1)")
    e(f"v_mfma_f32_32x32x16_bf16 {vr(S[0], 16)}, {vr(Kf[0], 4)}, {vr(Q, 4)}, {vr(C, 16)}")
    dma_chunk()
    e(f"s_mov_b32 s79, 0")
    e(f"s_setprio {os.environ.get('APRIO', '1')}")
    e("s_nop 7")
    k.label(f"L_{px}_loop")
    for u in range(CH):
        if u == 5:
            e("s_waitcnt vmcnt(0)")
            e("s_barrier")
            e(f"s_cmp_lt_u32 s79, {NCH - 3}")
            e(f"s_cbranch_scc1 L_{px}_refill")
            k.label(f"L_{px}_refilled")
        b = u % 2
        pv = [f"v_mfma_f32_32x32x16_bf16 {vr(O, 16)}, {vr(Vf[b ^ 1][t], 4)}, {vr(P + 4 * t, 4)}, {vr(O, 16)}" for t in range(2)]
        qk = f"v_mfma_f32_32x32x16_bf16 {vr(S[b ^ 1], 16)}, {vr(Kf[b ^ 1], 4)}, {vr(Q, 4)}, {vr(C, 16)}"
        s = S[b]
        e("s_waitcnt lgkmcnt(0)")
        e(pv[0])
        if u + 2 < CH:
            e(f"ds_read_b128 {vr(Kf[b], 4)}, v{vKa} offset:{(u + 2) * 1024}")
        else:
            e(f"ds_read_b128 {vr(Kf[b], 4)}, v{vKn} offset:{(u + 2 - CH) * 1024}")
        e("s_mov_b64 exec, s[76:77]")
        e(f"ds_read_b128 {vr(Vf[b][0], 4)}, v{vVa} offset:{u * 1024}")
        e(f"ds_read_b128 {vr(Vf[b][1], 4)}, v{vVa} offset:{u * 1024 + 512}")
        e("s_mov_b64 exec, -1")
        for i in range(16):
            e(f"v_exp_f32 v{s + i}, v{s + i}")
            if i == 9:
                e(pv[1])
            if i >= 2 and i % 2 == 0:
                e(f"v_cvt_pk_bf16_f32 v{P + i // 2 - 1}, v{s + i - 2}, v{s + i - 1}")
            if i == 4:
                e(qk)
        if u == CH - 1:
            e(f"v_add_u32 v{vVa}, {VOFF}, v{vKn}")
        else:
            e("s_nop 0")
        e(f"v_cvt_pk_bf16_f32 v{P + 7}, v{s + 14}, v{s + 15}")
    e(f"v_sub_u32 v{vVa}, v{vVa}, v{vL16}")
    e(f"v_mov_b32 v{vKa}, v{vKn}")
    e(f"v_add_u32 v{vVa}, v{vVa}, v{vVl}")
    e(f"v_add_u32 v{vKn}, {CH * 1024}, v{vKn}")
    e(f"v_and_b32 v{vKn}, {RING - 1}, v{vKn}")
    if K.STAMP and K.MODE == "mid":
        e("s_memtime s[100:101]")
        e("s_waitcnt lgkmcnt(0)")
        for it in range(7):
            e(f"s_cmp_eq_u32 s79, {it}")
            e(f"s_cselect_b32 s{87 + it}, s100, s{87 + it}")
    e("s_add_u32 s79, s79, 1")
    e(f"s_cmp_lt_u32 s79, {NCH}")
    e(f"s_cbranch_scc1 L_{px}_loop")
    e("s_waitcnt lgkmcnt(0)")
    for t in range(2):
        e(f"v_mfma_f32_32x32x16_bf16 {vr(O, 16)}, {vr(Vf[1][t], 4)}, {vr(P + 4 * t, 4)}, {vr(O, 16)}")
    e("s_lshl_b32 s38, s71, 13")
    e("s_add_u32 s38, s38, s72")
    e("s_add_u32 s38, s38, s73")
    e("s_nop 5")
    e(f"v_mov_b32 v{t1}, {fl(2.0 ** -64)}")
    e("s_nop 5")
    e(f"v_cmp_ngt_f32 vcc, v{O + 8}, v{t1}")
    e(f"s_cbranch_vccnz L_{px}_slow")
    k.label(f"L_{px}_fin")
    e(f"v_rcp_f32 v{t0}, v{O + 8}")
    e("s_nop 0")
    for i in range(8):
        e(f"v_mul_f32 v{O + i}, v{O + i}, v{t0}")
    pack8(k, O, P)
    e(f"buffer_store_dwordx4 {vr(P, 4)}, v{vL16}, s[20:23], s38 offen{sc('o')}")
    e(f"s_branch L_{k.name}_fin")
    k.label(f"L_{px}_refill")
    dma_chunk()
    e(f"s_branch L_{px}_refilled")
    k.label(f"L_{px}_slow")
    e(f"v_mov_b32 v{t0}, {fl(-3.0e38)}")
    e("s_mov_b32 s79, 0")
    e("s_mov_b32 s74, s72")
    k.label(f"L_{px}_slow_max")
    e(f"buffer_load_dwordx4 {vr(Kf[0], 4)}, v{vL16}, s[4:7], s74 offen")
    e("s_waitcnt vmcnt(0)")
    e(f"v_mfma_f32_32x32x16_bf16 {vr(S[0], 16)}, {vr(Kf[0], 4)}, {vr(Q, 4)}, 0")
    e("s_add_u32 s74, s74, 1024")
    e("s_nop 15")
    for i in range(0, 16, 2):
        e(f"v_max3_f32 v{t0}, v{S[0] + i}, v{S[0] + i + 1}, v{t0}")
    e("s_add_u32 s79, s79, 1")
    e(f"s_cmp_lt_u32 s79, {NT}")
    e(f"s_cbranch_scc1 L_{px}_slow_max")
    e(f"v_mov_b32 v{t1}, v{t0}")
    e("s_nop 1")
    e(f"v_permlane32_swap_b32 v{t0}, v{t1}")
    e("s_nop 1")
    e(f"v_max_f32 v{t0}, v{t0}, v{t1}")
    e(f"v_sub_f32 v{t0}, 0, v{t0}")
    for i in range(16):
        e(f"v_mov_b32 v{C + i}, v{t0}")
        e(f"v_mov_b32 v{O + i}, 0")
    e("s_mov_b32 s79, 0")
    e("s_mov_b32 s74, s72")
    k.label(f"L_{px}_slow_loop")
    e(f"buffer_load_dwordx4 {vr(Kf[0], 4)}, v{vL16}, s[4:7], s74 offen")
    e("s_mov_b64 exec, s[76:77]")
    e(f"buffer_load_dwordx4 {vr(Vf[0][0], 4)}, v{vVl}, s[8:11], s74 offen")
    e(f"buffer_load_dwordx4 {vr(Vf[0][1], 4)}, v{vVl}, s[8:11], s74 offen offset:512")
    e("s_mov_b64 exec, -1")
    e("s_waitcnt vmcnt(0)")
    e(f"v_mfma_f32_32x32x16_bf16 {vr(S[0], 16)}, {vr(Kf[0], 4)}, {vr(Q, 4)}, {vr(C, 16)}")
    e("s_add_u32 s74, s74, 1024")
    e("s_nop 15")
    for i in range(16):
        e(f"v_exp_f32 v{S[0] + i}, v{S[0] + i}")
    e("s_nop 0")
    pack8(k, S[0], P)
    pack8(k, S[0] + 8, P + 4)
    e("s_nop 1")
    for t in range(2):
        e(f"v_mfma_f32_32x32x16_bf16 {vr(O, 16)}, {vr(Vf[0][t], 4)}, {vr(P + 4 * t, 4)}, {vr(O, 16)}")
    e("s_add_u32 s79, s79, 1")
    e(f"s_cmp_lt_u32 s79, {NT}")
    e(f"s_cbranch_scc1 L_{px}_slow_loop")
    e("s_nop 15")
    e(f"s_branch L_{px}_fin")
    return 2 * RING
```

```python
import math, os
SC = os.environ.get('SC', 'qo')
def sc(c):
    return ' sc1' if (c in SC or c == '!') else ''
from asmlib import *

WS_Q, WS_K, WS_V = 0x000000, 0x200000, 0x400000
WS_H, WS_X1, WS_O = 0x600000, 0x800000, 0xA00000
WS_H3 = 0xC00000
WS_KN = 0x1304000
WS_PST = 0x1310000
WS_PG = 0x1360000
WS_CS3 = 0x1390000
WS_FLG = 0x13A0000
WS_BB = 0x1400000
WS_PART = 0x1800000
PART_BYTES = 32 * 64 * 3072
MB2 = 0x200000
H3_BYTES = 2048 * 1792 * 2

P_X, P_WQKV, P_WO, P_W1, P_W2, P_W3, P_W4, P_GATE, P_OUT, P_WS = 40, 42, 44, 48, 50, 52, 54, 56, 58, 62
LOG2E = 1.4426950408889634
QSCALE = 0.25 * LOG2E
GA1 = -2.0 * math.sqrt(2.0 / math.pi) * LOG2E
GA3 = GA1 * 0.044715

DPP_MAX = ("row_shr:1 row_mask:0xf bank_mask:0xf", "row_shr:2 row_mask:0xf bank_mask:0xf",
           "row_shr:4 row_mask:0xf bank_mask:0xf", "row_shr:8 row_mask:0xf bank_mask:0xf",
           "row_bcast:15 row_mask:0xa bank_mask:0xf", "row_bcast:31 row_mask:0xc bank_mask:0xf")

def srd(k, d, p, off, size):
    if off:
        k.e(f"s_add_u32 s{d}, s{p}, {hx(off)}")
        k.e(f"s_addc_u32 s{d+1}, s{p+1}, 0")
    else:
        k.e(f"s_mov_b32 s{d}, s{p}")
        k.e(f"s_mov_b32 s{d+1}, s{p+1}")
    k.e(f"s_mov_b32 s{d+2}, {hx(size)}")
    k.e(f"s_mov_b32 s{d+3}, 0x20000")

def head(k, nwg, fused=False):
    k.e(f"s_cmp_ge_u32 s2, {nwg}")
    k.e(f"s_cbranch_scc1 L_{k.name}_end")
    k.stamp(0)
    k.e("s_load_dwordx16 s[40:55], s[0:1], 0")
    k.e("s_load_dwordx8 s[56:63], s[0:1], 64")
    k.e("v_and_b32 v1, 63, v0")
    k.e("v_lshrrev_b32 v2, 6, v0")
    k.e("s_nop 0")
    k.e("v_readfirstlane_b32 s34, v2")
    k.e("s_and_b32 s35, s2, 7")
    k.e("s_lshr_b32 s36, s2, 3")
    if fused:
        k.e("s_lshr_b32 s33, s36, 5")
        k.e("s_xor_b32 s33, s33, s36")
        k.e("s_and_b32 s33, s33, 1")
        k.e("s_lshr_b32 s36, s36, 1")

SLOTS = {}
def tail(k):
    k.label(f"L_{k.name}_fin")
    if K.STAMP:
        k.stamp(10, K.MODE)
        k.e("s_waitcnt vmcnt(0)")
        k.stamp(11, K.MODE)
        k.stamp_store(SLOTS.setdefault(k.name, len(SLOTS)))
    k.label(f"L_{k.name}_end")
    k.e("s_endpgm")

def pack8(k, src, dst):
    for i in range(4):
        k.e(f"v_cvt_pk_bf16_f32 v{dst+i}, v{src+2*i}, v{src+2*i+1}")

def interleave(k, chains):
    n = max(len(c) for c in chains)
    for i in range(n):
        for c in chains:
            if i < len(c):
                if c[i] == "NOP":
                    if len(chains) < 2:
                        k.e("s_nop 0")
                    continue
                k.e(c[i])

def ln_gelu_pair(y, cs, nmean, rstd, t, cA1, cA3, one):
    p = lambda r: f"v[{r}:{r+1}]"
    return [
        f"v_pk_fma_f32 {p(y)}, {p(cs)}, {p(nmean)}, {p(y)} op_sel_hi:[1,0,1]",
        f"v_pk_mul_f32 {p(y)}, {p(y)}, {p(rstd)} op_sel_hi:[1,0]",
        f"v_pk_mul_f32 {p(t)}, {p(y)}, {p(y)}",
        f"v_pk_fma_f32 {p(t)}, {p(t)}, {p(cA3)}, {p(cA1)} op_sel_hi:[1,0,0]",
        f"v_pk_mul_f32 {p(t)}, {p(t)}, {p(y)}",
        f"v_exp_f32 v{t}, v{t}",
        f"v_exp_f32 v{t+1}, v{t+1}",
        "NOP",
        f"v_pk_add_f32 {p(t)}, {p(t)}, {p(one)} op_sel_hi:[1,0]",
        f"v_rcp_f32 v{t}, v{t}",
        f"v_rcp_f32 v{t+1}, v{t+1}",
        "NOP",
        f"v_pk_mul_f32 {p(y)}, {p(y)}, {p(t)}",
    ]

def rstd_from_sums(k, mean, rstd):
    e = k.e
    e(f"v_mul_f32 v{mean}, {fl(-1.0 / 512)}, v{mean}")
    e(f"v_mul_f32 v{rstd}, {fl(1.0 / 512)}, v{rstd}")
    e(f"v_fma_f32 v{rstd}, -v{mean}, v{mean}, v{rstd}")
    e(f"v_max_f32 v{rstd}, 0, v{rstd}")
    e(f"v_add_f32 v{rstd}, {fl(1e-5)}, v{rstd}")
    e(f"v_rsq_f32 v{rstd}, v{rstd}")

def ln_gelu_store(k, g, va, csr, nmean, rstd, vL16, s_mi, s_ni, s_tmp, srdO, scratch=None, cls="h"):
    e = k.e
    if scratch is None:
        scratch = va.a(24, 4)
    pk = [scratch, scratch + 4]
    tmp = [scratch + 8 + 2 * j for j in range(4)]
    cA1, cA3, one = scratch + 16, scratch + 18, scratch + 20
    e(f"v_mov_b32 v{cA1}, {fl(GA1)}")
    e(f"v_mov_b32 v{cA3}, {fl(GA3)}")
    e(f"v_mov_b32 v{one}, 1.0")
    cnt = 0
    for mi in range(g.MI):
        for ni in range(g.NI):
            a = g.acc[0][mi][ni]
            for half in range(2):
                chains = [ln_gelu_pair(a + half * 8 + 2 * j, csr[ni] + half * 8 + 2 * j, nmean[mi], rstd[mi], tmp[j], cA1, cA3, one)
                          for j in range(4)]
                interleave(k, chains)
                p = pk[cnt & 1]
                cnt += 1
                if half == 0:
                    e(f"s_add_u32 s{s_tmp}, s{s_mi[mi]}, s{s_ni[ni]}")
                else:
                    e(f"s_add_u32 s{s_tmp}, s{s_tmp}, 0x10000")
                pack8(k, a + half * 8, p)
                e(f"buffer_store_dwordx4 {vr(p, 4)}, v{vL16}, {sr(srdO, 4)}, s{s_tmp} offen{sc(cls)}")

def prefetch(k, srd_, vlane16, vdst, s_off, nper):
    for i in range(nper):
        if i and i % 4 == 0:
            k.e(f"s_add_u32 s{s_off}, s{s_off}, 4096")
        k.e(f"buffer_load_dwordx4 {vr(vdst, 4)}, v{vlane16}, {sr(srd_, 4)}, s{s_off} offen offset:{(i % 4) * 1024}")
```

```python
import os
from asmlib import *
from common import *
from gemm import *

GK = dict(wave_v=2, lane_v=1, s_row0=32, s_col0=33, s_wave=34, stmp=28, stmp2=76, nloaders=4, lwave_v=3, s_lwave=69)
NPRO = int(os.environ.get('NPRO', '2'))
G1MAP = os.environ.get('G1MAP', 'min')

def colsum_loads(k, ld, t0, t1):
    e = k.e
    srd(k, 20, P_W3, 0, 512 * 1792 * 2)
    e(f"v_bfe_u32 v{t0}, v0, 3, 5")
    e(f"v_mul_u32_u24 v{t0}, 3584, v{t0}")
    e(f"v_and_b32 v{t1}, 7, v0")
    e(f"v_lshl_add_u32 v{t0}, v{t1}, 4, v{t0}")
    e("s_lshl_b32 s83, s82, 7")
    e(f"v_add_u32 v{t0}, s83, v{t0}")

def gen_g1():
    k = K("g1_kernel")
    e = k.e
    head(k, 256)
    e("v_and_b32 v3, 3, v2")
    e("s_and_b32 s69, s34, 3")
    e("s_and_b32 s37, s36, 15")
    if G1MAP == 'min':
        e("s_and_b32 s38, s35, 3")
        e("s_lshl_b32 s38, s38, 2")
        e("s_and_b32 s39, s37, 3")
        e("s_add_u32 s70, s38, s39")
        e("s_lshr_b32 s38, s35, 2")
        e("s_lshl_b32 s38, s38, 2")
        e("s_lshr_b32 s39, s37, 2")
        e("s_add_u32 s71, s38, s39")
        e("s_lshl_b32 s79, s39, 1")
        e("s_and_b32 s39, s37, 1")
        e("s_add_u32 s79, s79, s39")
        e("s_lshr_b32 s39, s36, 4")
        e("s_add_u32 s79, s79, s39")
        e("s_and_b32 s39, s37, 2")
        e("s_lshl_b32 s39, s39, 1")
        e("s_add_u32 s79, s79, s39")
        e("s_and_b32 s79, s79, 7")
    else:
        e("s_mov_b32 s70, s37")
        e("s_mov_b32 s71, s35")
        e("s_and_b32 s79, s37, 7")
        e("s_cmp_lt_u32 s36, 16")
        e("s_cbranch_scc1 L_g1_map")
        e("s_lshl_b32 s70, s35, 1")
        e("s_and_b32 s38, s37, 1")
        e("s_add_u32 s70, s70, s38")
        e("s_lshr_b32 s71, s37, 1")
        e("s_lshl_b32 s38, s38, 2")
        e("s_add_u32 s79, s71, s38")
        e("s_and_b32 s79, s79, 7")
        k.label("L_g1_map")
    e("s_lshl_b32 s32, s70, 7")
    e("s_lshl_b32 s33, s71, 6")
    e("s_lshr_b32 s37, s34, 1")
    e("s_and_b32 s38, s34, 1")
    e("s_waitcnt lgkmcnt(0)")
    k.stamp(1)
    srd(k, 4, P_X, 0, MB2)
    e("s_cmp_ge_u32 s36, 16")
    e("s_cbranch_scc1 L_g1_w1")
    srd(k, 8, P_WQKV, 0, 512 * 1536 * 2)
    srd(k, 12, P_WS, WS_Q, 3 * MB2)
    srd(k, 16, P_WS, WS_KN, 4096)
    va = VAlloc(4)
    g = Gemm(k, va, 128, 192, 2, 2, 4, 1, [Seg(512, 4, 1024, 8, 3072, rot=79)], False, (True, True, False), **GK)
    g.alloc()
    e("s_cmp_lt_u32 s34, 4")
    e("s_cbranch_scc1 L_g1_qkv_c")
    g.setup_dma()
    g.run_loader()
    e(f"s_branch L_{k.name}_fin")
    k.label("L_g1_qkv_c")
    k.vm = []
    g.setup_reads()
    g.stamp_ids = (2, 3)
    g.stage_stamps = 2
    vS, vV, tt = va.a(), va.a(), va.a()
    pk = [va.a(4, 4), va.a(4, 4)]
    nr = va.a(4, 4)
    e("s_lshl_b32 s74, s71, 18")
    e("s_lshl_b32 s39, s38, 17")
    e("s_add_u32 s74, s74, s39")
    e("s_lshl_b32 s39, s70, 12")
    e("s_add_u32 s74, s74, s39")
    e("s_lshl_b32 s39, s37, 11")
    e("s_add_u32 s74, s74, s39")
    e(f"v_lshlrev_b32 v{vS}, 4, v1")
    e(f"v_bfe_u32 v{vV}, v1, 4, 1")
    e(f"v_lshlrev_b32 v{vV}, 16, v{vV}")
    e(f"v_lshrrev_b32 v{tt}, 5, v1")
    e(f"v_lshl_add_u32 v{vV}, v{tt}, 8, v{vV}")
    e(f"v_and_b32 v{tt}, 15, v1")
    e(f"v_lshl_add_u32 v{vV}, v{tt}, 4, v{vV}")
    g.run_compute()
    lds = g.lds_bytes
    e(f"s_add_u32 s75, s74, {hx(2 * MB2)}")
    e("s_nop 7")
    e("s_nop 3")
    cnt = 0
    for mi in range(2):
        for tq in range(2):
            a = g.acc[0][mi][2] + tq * 8
            p = pk[cnt & 1]; cnt += 1
            pack8(k, a, p)
            e(f"buffer_store_dwordx4 {vr(p, 4)}, v{vV}, s[12:15], s75 offen offset:{mi * 1024 + tq * 512}{sc('q')}")
    for hf in range(2):
        e(f"s_add_u32 s75, s74, {hx(MB2 + (hf << 16))}")
        for mi in range(2):
            a = g.acc[0][mi][1] + hf * 8
            p = pk[cnt & 1]; cnt += 1
            pack8(k, a, p)
            e(f"buffer_store_dwordx4 {vr(p, 4)}, v{vS}, s[12:15], s75 offen offset:{mi * 1024}{sc('q')}")
            n = nr + mi * 2 + hf
            e(f"v_mul_f32 v{n}, v{a}, v{a}")
            for i in range(1, 8):
                e(f"v_fmac_f32 v{n}, v{a+i}, v{a+i}")
    for hf in range(2):
        e(f"s_add_u32 s75, s74, {hx(hf << 16)}")
        for mi in range(2):
            a = g.acc[0][mi][0] + hf * 8
            for i in range(8):
                e(f"v_mul_f32 v{a+i}, {fl(QSCALE)}, v{a+i}")
            p = pk[cnt & 1]; cnt += 1
            pack8(k, a, p)
            e(f"buffer_store_dwordx4 {vr(p, 4)}, v{vS}, s[12:15], s75 offen offset:{mi * 1024}{sc('q')}")
    for hh in range(2):
        e(f"v_permlane32_swap_b32 v{nr+hh}, v{nr+2+hh}")
    e("s_nop 1")
    for hh in range(2):
        e(f"v_add_f32 v{nr+hh}, v{nr+hh}, v{nr+2+hh}")
    for dpp in DPP_MAX:
        e("s_nop 1")
        for hh in range(2):
            e(f"v_max_f32_dpp v{nr+hh}, v{nr+hh}, v{nr+hh} {dpp}")
    e("s_lshl_b32 s75, s70, 1")
    e("s_add_u32 s75, s75, s37")
    e("s_lshl_b32 s75, s75, 7")
    e("s_lshl_b32 s39, s71, 4")
    e("s_add_u32 s75, s75, s39")
    e("s_lshl_b32 s39, s38, 3")
    e("s_add_u32 s75, s75, s39")
    e(f"v_mov_b32 v{vS}, 0")
    e("s_mov_b32 s66, 0")
    e("s_mov_b32 s67, 0x80000000")
    e("s_mov_b64 exec, s[66:67]")
    e(f"buffer_store_dwordx2 {vr(nr, 2)}, v{vS}, s[16:19], s75 offen")
    e(f"s_branch L_{k.name}_fin")
    maxv = va.n
    k.label("L_g1_w1")
    k.vm = []
    srd(k, 8, P_W1, 0, 512 * 512 * 2)
    srd(k, 12, P_WS, WS_H, MB2)
    va = VAlloc(4)
    g = Gemm(k, va, 128, 64, 2, 2, 4, 1, [Seg(512, 4, 1024, 8, 1024, rot=79)], False, True, xorroles=True, **GK)
    g.alloc()
    STAT = g.lds_bytes
    s1, s2, cs, dm, ones = [va.a() for _ in range(5)]
    ld = va.a(64, 4)
    vcs = va.a()
    t = g.t
    CSL = STAT + 2048
    e("s_cmp_lt_u32 s34, 4")
    e("s_cbranch_scc1 L_g1_w1_c")
    g.setup_dma()
    e("s_lshl_b32 s82, s35, 4")
    e("s_add_u32 s82, s82, s36")
    e("s_sub_u32 s82, s82, 16")
    e("s_and_b32 s39, s82, 3")
    e("s_lshr_b32 s82, s82, 2")
    e("s_cmp_eq_u32 s39, 0")
    e("s_cselect_b32 s82, s82, 99")
    pfd = va.a(4, 4)
    def side():
        colsum_loads(k, ld, vcs, t[0])
        e("s_cmp_lt_u32 s82, 28")
        e(f"s_cselect_b32 s22, {hx(512 * 1792 * 2)}, 0")
        e("s_mov_b32 s83, 0")
        for j in range(16):
            k.vmem(f"buffer_load_dwordx4 {vr(ld + 4 * j, 4)}, v{vcs}, s[20:23], s83 offen", "side")
            e(f"s_add_u32 s83, s83, {32 * 3584}")
    g.run_loader(side)
    ac = g.acc[0][0][0]
    for i in range(8):
        e(f"v_mov_b32 v{ac + i}, 0")
    for j in range(16):
        e(f"s_waitcnt vmcnt({15 - j})")
        for d in range(4):
            e(f"v_lshlrev_b32 v{t[1]}, 16, v{ld + 4 * j + d}")
            e(f"v_and_b32 v{t[2]}, 0xffff0000, v{ld + 4 * j + d}")
            e(f"v_add_f32 v{ac + 2 * d}, v{ac + 2 * d}, v{t[1]}")
            e(f"v_add_f32 v{ac + 2 * d + 1}, v{ac + 2 * d + 1}, v{t[2]}")
    e(f"v_and_b32 v{t[0]}, 255, v0")
    e(f"v_lshlrev_b32 v{t[0]}, 5, v{t[0]}")
    e(f"v_add_u32 v{t[0]}, {CSL}, v{t[0]}")
    e(f"ds_write_b128 v{t[0]}, {vr(ac, 4)}")
    e(f"ds_write_b128 v{t[0]}, {vr(ac + 4, 4)} offset:16")
    srd(k, 4, P_W2, 0, 512 * 512 * 2)
    e("s_and_b32 s64, s36, 15")
    e("s_lshl_b32 s64, s64, 2")
    e("s_add_u32 s64, s64, s69")
    e("s_lshl_b32 s64, s64, 13")
    e(f"v_lshlrev_b32 v{t[3]}, 4, v1")
    prefetch(k, 4, t[3], pfd, 64, 8)
    e("s_waitcnt lgkmcnt(0)")
    e("s_barrier")
    e("s_cmp_lg_u32 s34, 4")
    e(f"s_cbranch_scc1 L_{k.name}_fin")
    e("s_cmp_lt_u32 s82, 28")
    e("s_cbranch_scc1 L_g1_cs")
    e("s_cmp_lg_u32 s82, 31")
    e(f"s_cbranch_scc1 L_{k.name}_fin")
    srd(k, 12, P_WS, WS_FLG, 4096)
    for i in range(4):
        e(f"v_mov_b32 v{ld + i}, 0")
    for i in range(4):
        e(f"buffer_store_dwordx4 {vr(ld, 4)}, v{t[3]}, s[12:15], 0 offen offset:{i * 1024}")
    e(f"s_branch L_{k.name}_fin")
    k.label("L_g1_cs")
    srd(k, 12, P_WS, WS_CS3, 1792 * 4)
    e(f"v_lshlrev_b32 v{t[0]}, 2, v1")
    e(f"v_add_u32 v{t[1]}, {CSL}, v{t[0]}")
    for r in range(32):
        e(f"ds_read_b32 v{ld + r}, v{t[1]} offset:{r * 256}")
        if r % 8 == 7:
            e("s_waitcnt lgkmcnt(0)")
    for r in range(1, 32):
        e(f"v_add_f32 v{ld}, v{ld}, v{ld + r}")
    e("s_lshl_b32 s68, s82, 8")
    e(f"buffer_store_dword v{ld}, v{t[0]}, s[12:15], s68 offen")
    e(f"s_branch L_{k.name}_fin")
    k.label("L_g1_w1_c")
    k.vm = []
    g.setup_reads()
    g.stamp_ids = (2, 3)
    g.stage_stamps = 2
    for r in (s1, s2, cs):
        e(f"v_mov_b32 v{r}, 0")
    e(f"v_mov_b32 v{ones}, 0x3f803f80")
    def extra(st, step, buf, gs):
        l = []
        x = g.X[buf][0]
        w = g.W[buf][0]
        for i in range(4):
            l.append(f"v_dot2c_f32_bf16 v{s2}, v{x+i}, v{x+i}")
            l.append(f"v_dot2c_f32_bf16 v{s1}, v{x+i}, v{ones}")
            l.append(f"v_dot2c_f32_bf16 v{cs}, v{w+i}, v{ones}")
        return l
    g.run_compute(extra)
    e("s_nop 3")
    e(f"v_mov_b32 v{dm}, v{cs}")
    e(f"v_and_b32 v{t[0]}, 31, v1")
    e(f"v_lshrrev_b32 v{t[1]}, 5, v1")
    e(f"v_permlane32_swap_b32 v{s1}, v{s2}")
    e(f"v_permlane32_swap_b32 v{dm}, v{cs}")
    e("s_lshl_b32 s39, s37, 8")
    e("s_lshl_b32 s64, s38, 7")
    e(f"v_add_f32 v{s1}, v{s1}, v{s2}")
    e(f"v_add_f32 v{cs}, v{dm}, v{cs}")
    e("s_add_u32 s39, s39, s64")
    e(f"s_add_u32 s39, s39, {STAT}")
    e(f"s_add_u32 s64, s64, {STAT + 1024}")
    e(f"v_lshlrev_b32 v{t[2]}, 2, v{t[0]}")
    e(f"v_lshl_add_u32 v{t[3]}, v{t[1]}, 9, v{t[2]}")
    e(f"v_add_u32 v{t[3]}, s39, v{t[3]}")
    e(f"ds_write_b32 v{t[3]}, v{s1}")
    e(f"v_add_u32 v{t[4]}, s64, v{t[2]}")
    e(f"ds_write_b32 v{t[4]}, v{cs}")
    e("s_waitcnt lgkmcnt(0)")
    e("s_barrier")
    csr = [va.a(16, 4)]
    mean = [va.a(2, 2), va.a(2, 2)]
    rstd = [va.a(2, 2), va.a(2, 2)]
    vO = va.a()
    for mi in range(2):
        e(f"s_xor_b32 s65, s38, {mi}")
        e("s_lshl_b32 s65, s65, 5")
        e("s_lshl_b32 s66, s37, 6")
        e("s_add_u32 s65, s65, s66")
        e("s_lshl_b32 s66, s65, 2")
        e(f"s_add_u32 s66, s66, {STAT}")
        e(f"v_add_u32 v{t[3]}, s66, v{t[2]}")
        e(f"ds_read_b32 v{mean[mi]}, v{t[3]}")
        e(f"ds_read_b32 v{rstd[mi]}, v{t[3]} offset:512")
        e("s_add_u32 s65, s65, s32")
        e(f"s_lshl_b32 s{80 + mi}, s65, 5")
    e(f"v_lshlrev_b32 v{t[3]}, 4, v{t[1]}")
    e(f"v_add_u32 v{t[3]}, s64, v{t[3]}")
    for q in range(4):
        e(f"ds_read_b128 {vr(csr[0] + 4 * q, 4)}, v{t[3]} offset:{q * 32}")
    e("s_lshl_b32 s68, s38, 5")
    e("s_add_u32 s68, s68, s33")
    e("s_lshl_b32 s68, s68, 12")
    e(f"v_lshlrev_b32 v{vO}, 4, v1")
    e("s_waitcnt lgkmcnt(0)")
    for mi in range(2):
        rstd_from_sums(k, mean[mi], rstd[mi])
    ln_gelu_store(k, g, va, csr, mean, rstd, vO, (80, 81), (68,), 64, 12)
    maxv = max(maxv, va.n)
    lds = max(lds, CSL + 8192)
    tail(k)
    return k, maxv, lds
```

```python
from asmlib import *
import os
DBG = os.environ.get('GDBG', '')

class VAlloc:
    def __init__(self, start=0):
        self.n = start
    def a(self, cnt=1, align=1):
        self.n = (self.n + align - 1) // align * align
        b = self.n
        self.n += cnt
        return b

class Seg:
    def __init__(self, K, srdA, lda, srdB, ldb, a0=0, b0=0, shift=0, acc=0, rot=None, dynshift=False):
        self.K, self.srdA, self.lda, self.srdB, self.ldb = K, srdA, lda, srdB, ldb
        self.aflag = ""
        self.rot, self.dynshift = rot, dynshift
        self.a0, self.b0, self.shift, self.acc = a0, b0, shift, acc
        self.Akey = (srdA, lda, shift)
        self.Bkey = (srdB, ldb)

class Gemm:
    def __init__(self, k, va, TM, TN, WM, WN, NS, SUB, segs, perm, swapped, BK=64, lds_base=0,
                 xorroles=False, wave_v=None, lane_v=None, s_row0=None, s_col0=None, s_wave=None, stmp=None, stmp2=None,
                 nloaders=None, lwave_v=None, s_lwave=None, afrag=False, bcol=None, NBUF=2):
        self.NBUF = NBUF
        self.st2 = stmp2
        self.stamp_ids = None
        grp = bool(nloaders)
        self.GA = 4 if (grp and not any(x.dynshift for x in segs)) else 1
        self.GB = 4 if grp else 1
        self.stage_stamps = 0
        self.lpro = int(os.environ.get('LPRO', '2'))
        self.dma_prio = None
        self.afrag = afrag
        self.nloaders, self.lwave_v, self.s_lwave = nloaders, lwave_v, s_lwave
        self.k, self.va = k, va
        self.TM, self.TN, self.WM, self.WN, self.NS, self.SUB, self.BK = TM, TN, WM, WN, NS, SUB, BK
        self.NW = WM * WN
        self.MI = TM // WM // 32
        self.NI = TN // WN // 32
        self.segs, self.perm, self.swapped = segs, perm, swapped
        self.lds_base = lds_base
        self.xor = xorroles
        self.xorB = xorroles and (TN // WN // 32 == 2)
        self.bcol = bcol
        self.wave_v, self.lane_v = wave_v, lane_v
        self.s_row0, self.s_col0, self.s_wave, self.st = s_row0, s_col0, s_wave, stmp
        self.rowA = BK * 2
        self.rowB = TN * 2
        self.KS = BK // 16
        self.Ab = TM * self.rowA
        self.Bb = BK * self.rowB
        self.subsz = self.Ab + self.Bb
        self.slot = self.subsz * SUB
        self.RPA = 1024 // self.rowA
        self.CPA = self.rowA // 16
        nl = nloaders or self.NW
        self.nA = self.Ab // 1024 // nl
        self.nB = self.Bb // 1024 // nl
        assert self.nA >= 1 and self.nB >= 1
        self.RPI = 1024 // self.rowB if 1024 % self.rowB == 0 else None
        self.CPR = self.rowB // 16
        subs = []
        for si, s in enumerate(segs):
            assert s.K % BK == 0
            for ko in range(0, s.K, BK):
                subs.append((si, ko))
        assert len(subs) % SUB == 0
        self.stages = [subs[i:i + SUB] for i in range(0, len(subs), SUB)]
        self.nacc = max(s.acc for s in segs) + 1
        self.lds_bytes = self.slot * NS
        assert lds_base == 0
        self.spw = max(1, 65536 // self.slot)
        self.wsz = self.spw * self.slot
        self.nwin = (NS + self.spw - 1) // self.spw
        self.win0 = 0

    def alloc(self):
        va = self.va
        self.acc = [[[va.a(16, 4) for _ in range(self.NI)] for _ in range(self.MI)] for _ in range(self.nacc)]
        self.X = [[va.a(4, 4) for _ in range(self.MI)] for _ in range(self.NBUF)]
        self.W = [[va.a(4, 4) for _ in range(self.NI)] for _ in range(self.NBUF)]
        self.vA = {}
        self.vB = {}
        for s in self.segs:
            if s.Akey not in self.vA:
                self.vA[s.Akey] = (s, [va.a() for _ in range(self.nA)])
            if s.Bkey not in self.vB:
                self.vB[s.Bkey] = (s, [va.a() for _ in range(self.nB)])
        nmi = self.MI if self.xor else 1
        if self.afrag:
            assert not self.xor
            self.aA = {}
            for w in range(self.win0, self.nwin):
                r = va.a()
                for ks in range(self.KS):
                    self.aA[(w, ks, 0)] = r
        else:
            self.aA = {(w, ks, mi): va.a() for w in range(self.win0, self.nwin) for ks in range(self.KS) for mi in range(nmi)}
        self.aB = {(w, ni): va.a() for w in range(self.win0, self.nwin) for ni in range(self.NI)}
        self.t = [va.a() for _ in range(6)]
        self.s_wA = self.st + 0
        self.s_wB = self.st + 1
        self.s_oA = self.st + 2
        self.s_oB = self.st + 3
        self.s_tA = self.st2 + 0
        self.s_tB = self.st2 + 1
        self.s_t2 = self.st2 + 2
        self.vAc = [va.a() for _ in range(self.nA)] if any(s.dynshift for s in self.segs) else None
        self.vAk = [va.a() for _ in range(self.nA)] if any(s.dynshift for s in self.segs) else None

    def setup_dma(self):
        self.setup_dma0()
        for grp, tab in ((self.GA, self.vA), (self.GB, self.vB)):
            for key, (s, regs) in tab.items():
                for j, r in enumerate(regs):
                    if j % grp:
                        self.k.e(f"v_subrev_u32 v{r}, {(j % grp) * 1024}, v{r}")

    def setup_dma0(self):
        k, t = self.k, self.t
        L, Wv = self.lane_v, (self.lwave_v if self.nloaders else self.wave_v)
        sw = self.s_lwave if self.nloaders else self.s_wave
        e = k.e
        e(f"s_mul_i32 s{self.s_wA}, s{sw}, {self.nA * 1024}")
        e(f"s_mul_i32 s{self.s_wB}, s{sw}, {self.nB * 1024}")
        e(f"s_add_u32 s{self.s_wB}, s{self.s_wB}, {self.Ab}")
        if self.afrag:
            RT = self.TM // 32
            assert RT % self.nA == 0 or self.nA % RT == 0
            for key, (s, regs) in self.vA.items():
                for j, r in enumerate(regs):
                    e(f"v_mul_u32_u24 v{t[0]}, {self.nA}, v{Wv}")
                    if j:
                        e(f"v_add_u32 v{t[0]}, {j}, v{t[0]}")
                    e(f"v_and_b32 v{t[1]}, {RT - 1}, v{t[0]}")
                    e(f"v_lshrrev_b32 v{t[0]}, {RT.bit_length() - 1}, v{t[0]}")
                    if s.dynshift:
                        e(f"v_and_b32 v{t[2]}, 31, v{L}")
                        e(f"v_lshl_add_u32 v{t[2]}, v{t[1]}, 5, v{t[2]}")
                        e(f"v_add_u32 v{r}, s{self.s_row0}, v{t[2]}")
                        e(f"v_lshrrev_b32 v{t[2]}, 5, v{L}")
                        e(f"v_lshlrev_b32 v{t[2]}, 9, v{t[2]}")
                        e(f"v_lshl_add_u32 v{self.vAk[j]}, v{t[0]}, 16, v{t[2]}")
                    else:
                        e(f"v_lshlrev_b32 v{r}, 4, v{L}")
                        e(f"v_lshl_add_u32 v{r}, v{t[1]}, 10, v{r}")
                        e(f"v_lshl_add_u32 v{r}, v{t[0]}, 16, v{r}")
                        e(f"s_lshl_b32 s{self.s_oA}, s{self.s_row0}, 5")
                        e(f"v_add_u32 v{r}, s{self.s_oA}, v{r}")
        else:
            sh = {8: 3, 4: 2}[self.CPA]
            e(f"v_lshrrev_b32 v{t[0]}, {sh}, v{L}")
            e(f"v_mul_u32_u24 v{t[1]}, {self.nA * self.RPA}, v{Wv}")
            e(f"v_add3_u32 v{t[0]}, v{t[0]}, v{t[1]}, s{self.s_row0}")
            e(f"v_lshrrev_b32 v{t[1]}, 4, v{L}")
            e(f"v_and_b32 v{t[2]}, {self.CPA - 1}, v{L}")
            e(f"v_xor_b32 v{t[3]}, v{t[2]}, v{t[1]}")
            if self.BK == 64:
                e(f"v_xor_b32 v{t[4]}, 4, v{t[3]}")
            else:
                e(f"v_mov_b32 v{t[4]}, v{t[3]}")
            e(f"v_lshlrev_b32 v{t[3]}, 4, v{t[3]}")
            e(f"v_lshlrev_b32 v{t[4]}, 4, v{t[4]}")
            for key, (s, regs) in self.vA.items():
                e(f"s_mov_b32 s{self.s_oA}, {s.lda}")
                e(f"v_mul_lo_u32 v{t[5]}, v{t[0]}, s{self.s_oA}")
                for j, r in enumerate(regs):
                    c = (self.RPA * j + s.shift) * s.lda
                    e(f"v_add_u32 v{r}, v{t[5]}, v{t[3 + (j & 1)]}")
                    if c:
                        e(f"v_add_u32 v{r}, {hx(c)}, v{r}")
        if self.CPR == 24:
            (s, regs), = self.vB.values()
            e(f"s_mov_b32 s{self.s_oB}, {hx((1 << 32) // 24 + 1)}")
            e(f"s_mov_b32 s{self.s_oA}, {s.ldb}")
            e(f"s_lshl_b32 s{self.s_tA}, s{self.s_col0}, 1")
            for j, r in enumerate(regs):
                e(f"v_mul_u32_u24 v{t[0]}, {self.nB * 64}, v{Wv}")
                e(f"v_add3_u32 v{t[0]}, v{t[0]}, v{L}, {j * 64}" if j * 64 <= 64 else f"v_add_u32 v{t[0]}, {j * 64}, v{t[0]}")
                if j * 64 > 64:
                    e(f"v_add_u32 v{t[0]}, v{t[0]}, v{L}")
                e(f"v_mul_hi_u32 v{t[1]}, v{t[0]}, s{self.s_oB}")
                e(f"v_mul_u32_u24 v{t[2]}, 24, v{t[1]}")
                e(f"v_sub_u32 v{t[2]}, v{t[0]}, v{t[2]}")
                e(f"v_bfe_u32 v{t[3]}, v{t[1]}, 1, 1")
                e(f"v_lshlrev_b32 v{t[3]}, 2, v{t[3]}")
                e(f"v_xor_b32 v{t[2]}, v{t[2]}, v{t[3]}")
                e(f"v_lshrrev_b32 v{t[3]}, 3, v{t[2]}")
                e(f"v_and_b32 v{t[2]}, 7, v{t[2]}")
                e(f"v_lshlrev_b32 v{t[4]}, 10, v{t[3]}")
                e(f"v_lshl_add_u32 v{t[4]}, v{t[2]}, 4, v{t[4]}")
                e(f"v_mul_lo_u32 v{r}, v{t[1]}, s{self.s_oA}")
                e(f"v_add3_u32 v{r}, v{r}, v{t[4]}, s{self.s_tA}")
            return
        sh = {16: 4, 8: 3}[self.CPR]
        e(f"v_lshrrev_b32 v{t[0]}, {sh}, v{L}")
        e(f"v_mul_u32_u24 v{t[1]}, {self.nB * self.RPI}, v{Wv}")
        e(f"v_add_u32 v{t[0]}, v{t[0]}, v{t[1]}")
        e(f"v_and_b32 v{t[2]}, {self.CPR - 1}, v{L}")
        e(f"v_lshrrev_b32 v{t[1]}, 4, v{L}")
        if self.CPR == 8:
            e(f"v_and_b32 v{t[1]}, 1, v{t[1]}")
        e(f"v_lshlrev_b32 v{t[1]}, 2, v{t[1]}")
        e(f"v_xor_b32 v{t[2]}, v{t[2]}, v{t[1]}")
        e(f"v_lshlrev_b32 v{t[2]}, 4, v{t[2]}")
        e(f"s_lshl_b32 s{self.s_oA}, s{self.s_col0}, 1")
        e(f"v_add_u32 v{t[2]}, s{self.s_oA}, v{t[2]}")
        for key, (s, regs) in self.vB.items():
            e(f"s_mov_b32 s{self.s_oA}, {s.ldb}")
            e(f"v_mul_lo_u32 v{t[5]}, v{t[0]}, s{self.s_oA}")
            for j, r in enumerate(regs):
                e(f"v_add_u32 v{r}, v{t[5]}, v{t[2]}")
                c = j * self.RPI * s.ldb
                if c:
                    e(f"v_add_u32 v{r}, {hx(c)}, v{r}")

    def setup_reads(self):
        k, t = self.k, self.t
        L, Wv = self.lane_v, self.wave_v
        e = k.e
        lg = {1: 0, 2: 1, 4: 2}[self.WN]
        lgA = {128: 7, 64: 6}[self.rowA]
        e(f"v_lshrrev_b32 v{t[0]}, {lg}, v{Wv}")
        e(f"v_and_b32 v{t[1]}, {self.WN - 1}, v{Wv}")
        e(f"v_and_b32 v{t[2]}, 31, v{L}")
        e(f"v_lshrrev_b32 v{t[3]}, 5, v{L}")
        if self.afrag:
            r = self.aA[(self.win0, 0, 0)]
            e(f"v_mul_u32_u24 v{t[4]}, {self.MI * 1024}, v{t[0]}")
            e(f"v_lshl_add_u32 v{r}, v{L}, 4, v{t[4]}")
            if self.win0:
                e(f"v_add_u32 v{r}, {hx(self.win0 * 65536)}, v{r}")
            for w in range(self.win0 + 1, self.nwin):
                e(f"v_add_u32 v{self.aA[(w, 0, 0)]}, {hx(w * self.wsz)}, v{r}")
        else:
            e(f"v_mul_u32_u24 v{t[4]}, {self.TM // self.WM * self.rowA}, v{t[0]}")
            e(f"v_lshl_add_u32 v{t[4]}, v{t[2]}, {lgA}, v{t[4]}")
            if self.BK == 64:
                e(f"v_bfe_u32 v{t[5]}, v{L}, 1, 3")
            else:
                e(f"v_bfe_u32 v{t[5]}, v{L}, 2, 2")
            e(f"v_xor_b32 v{t[5]}, v{t[5]}, v{t[3]}")
            nmi = self.MI if self.xor else 1
            for ks in range(self.KS):
                for mi in range(nmi):
                    r = self.aA[(self.win0, ks, mi)]
                    e(f"v_xor_b32 v{r}, {2 * ks}, v{t[5]}")
                    e(f"v_lshl_add_u32 v{r}, v{r}, 4, v{t[4]}")
                    if self.xor:
                        e(f"v_xor_b32 v{t[2]}, {mi}, v{t[1]}")
                        e(f"v_lshl_add_u32 v{r}, v{t[2]}, {lgA + 5}, v{r}")
                    if self.win0:
                        e(f"v_add_u32 v{r}, {hx(self.win0 * 65536)}, v{r}")
                    for w in range(self.win0 + 1, self.nwin):
                        e(f"v_add_u32 v{self.aA[(w, ks, mi)]}, {hx(w * self.wsz)}, v{r}")
        e(f"v_bfe_u32 v{t[2]}, v{L}, 2, 2")
        e(f"v_lshl_add_u32 v{t[4]}, v{t[3]}, {2 if self.perm else 3}, v{t[2]}")
        e(f"v_mul_u32_u24 v{t[4]}, {self.rowB}, v{t[4]}")
        e(f"v_and_b32 v{t[5]}, 1, v{L}")
        e(f"v_lshl_add_u32 v{t[4]}, v{t[5]}, 3, v{t[4]}")
        if self.CPR != 16:
            e(f"v_lshrrev_b32 v{t[2]}, 1, v{t[2]}")
        e(f"v_lshlrev_b32 v{t[2]}, 2, v{t[2]}")
        e(f"v_bfe_u32 v{t[5]}, v{L}, 4, 1")
        e(f"v_lshlrev_b32 v{t[5]}, 1, v{t[5]}")
        e(f"v_bfe_u32 v{t[3]}, v{L}, 1, 1")
        e(f"v_add_u32 v{t[5]}, v{t[5]}, v{t[3]}")
        e(f"v_mul_u32_u24 v{t[3]}, {4 if self.CPR == 24 else self.TN // self.WN // 8}, v{t[1]}")
        e(f"v_add_u32 v{t[5]}, v{t[5]}, v{t[3]}")
        for ni in range(self.NI):
            r = self.aB[(self.win0, ni)]
            if self.xorB:
                e(f"v_xor_b32 v{t[3]}, {ni}, v{t[0]}")
                e(f"v_lshl_add_u32 v{r}, v{t[3]}, 2, v{t[5]}")
            else:
                e(f"v_add_u32 v{r}, {(8 if self.CPR == 24 else 4) * ni}, v{t[5]}")
            e(f"v_xor_b32 v{r}, v{r}, v{t[2]}")
            e(f"v_lshl_add_u32 v{r}, v{r}, 4, v{t[4]}")
            if self.win0:
                e(f"v_add_u32 v{r}, {hx(self.win0 * 65536)}, v{r}")
            for w in range(self.win0 + 1, self.nwin):
                e(f"v_add_u32 v{self.aB[(w, ni)]}, {hx(w * self.wsz)}, v{r}")

    def dma_ops(self, st):
        ops = []
        base = self.lds_base + (st % self.NS) * self.slot
        si0, ko0 = self.stages[st][0]
        s = self.segs[si0]
        assert all(x[0] == si0 for x in self.stages[st])
        kb = 4096 if self.afrag else 2
        dA = self.SUB * self.BK * kb
        dB = self.SUB * self.BK * s.ldb
        init = []
        if ko0 == 0:
            if s.rot is None:
                init += [f"s_mov_b32 s{self.s_oA}, {hx(s.a0)}", f"s_mov_b32 s{self.s_oB}, {hx(s.b0 * s.ldb)}"]
            else:
                init += [f"s_mul_i32 s{self.s_oA}, s{s.rot}, {hx(dA)}", f"s_mul_i32 s{self.s_oB}, s{s.rot}, {hx(dB)}"]
                if s.a0:
                    init.append(f"s_add_u32 s{self.s_oA}, s{self.s_oA}, {hx(s.a0)}")
                if s.b0:
                    init.append(f"s_add_u32 s{self.s_oB}, s{self.s_oB}, {hx(s.b0 * s.ldb)}")
        else:
            init += [f"s_add_u32 s{self.s_oA}, s{self.s_oA}, {hx(dA)}", f"s_add_u32 s{self.s_oB}, s{self.s_oB}, {hx(dB)}"]
            if s.rot is not None:
                init += [f"s_cmp_eq_u32 s{self.s_oA}, {hx(s.a0 + s.K * kb)}",
                         f"s_cselect_b32 s{self.s_oA}, {hx(s.a0)}, s{self.s_oA}",
                         f"s_cselect_b32 s{self.s_oB}, {hx(s.b0 * s.ldb)}, s{self.s_oB}"]
        if s.dynshift:
            assert self.SUB == 1
            assert self.afrag
            t = self.t
            init += [f"s_lshr_b32 s{self.s_t2}, s{self.s_oA}, 20",
                     f"s_add_u32 s{self.s_t2}, s{self.s_t2}, 1",
                     f"s_sub_u32 s{self.s_tA}, 0, s{self.s_t2}",
                     f"s_bitcmp1_b32 s{self.s_oA}, 19",
                     f"s_cselect_b32 s{self.s_t2}, s{self.s_t2}, s{self.s_tA}",
                     f"s_movk_i32 s{self.s_tA}, 2048"]
            for j, r in enumerate(self.vA[s.Akey][1]):
                c = self.vAc[j]
                init += [f"v_add_u32 v{t[0]}, s{self.s_t2}, v{r}",
                         f"v_lshrrev_b32 v{t[1]}, 5, v{t[0]}",
                         f"v_and_b32 v{c}, 31, v{t[0]}",
                         f"v_cmp_gt_u32 vcc, s{self.s_tA}, v{t[0]}",
                         f"v_lshl_add_u32 v{c}, v{c}, 4, v{self.vAk[j]}",
                         f"v_lshl_add_u32 v{c}, v{t[1]}, 10, v{c}",
                         f"v_bfrev_b32 v{t[1]}, 1",
                         f"v_cndmask_b32 v{c}, v{t[1]}, v{c}, vcc"]
        for u in range(self.SUB):
            sb = base + u * self.subsz
            sa_, sb_ = self.s_oA, self.s_oB
            for j, r in enumerate(self.vAc if s.dynshift else self.vA[s.Akey][1]):
                pre = init
                init = []
                if j == 0 and u:
                    pre = pre + [f"s_add_u32 s{self.s_tA}, s{self.s_oA}, {hx(u * self.BK * kb)}"]
                if j % self.GA == 0:
                    pre = pre + [f"s_add_u32 m0, s{self.s_wA}, {hx(sb + j * 1024)}", "s_nop 0"]
                ops.append((pre, f"buffer_load_dwordx4 v{r}, {sr(s.srdA, 4)}, s{self.s_tA if u else self.s_oA} offen offset:{(j % self.GA) * 1024}{s.aflag} lds", st))
            for j, r in enumerate(self.vB[s.Bkey][1]):
                pre = []
                if j == 0 and u:
                    pre.append(f"s_add_u32 s{self.s_tB}, s{self.s_oB}, {hx(u * self.BK * s.ldb)}")
                if j % self.GB == 0:
                    pre = pre + [f"s_add_u32 m0, s{self.s_wB}, {hx(sb + j * 1024)}", "s_nop 0"]
                ops.append((pre, f"buffer_load_dwordx4 v{r}, {sr(s.srdB, 4)}, s{self.s_tB if u else self.s_oB} offen offset:{(j % self.GB) * 1024} lds", st))
        return ops

    def emit_op(self, o):
        for p in o[0]:
            self.k.e(p if not (p == "s_nop 0" and self.dma_prio) else f"s_setprio {self.dma_prio[0]}")
        self.k.vmem(o[1] if not ('d' in DBG and self.afrag) else "s_nop 0", ("dma", id(self), o[2]))
        if self.dma_prio:
            self.k.e(f"s_setprio {self.dma_prio[1]}")

    def read_list(self, st, step, buf):
        u, ks = divmod(step, self.KS)
        sb = self.lds_base + (st % self.NS) * self.slot + u * self.subsz
        w = (st % self.NS) // self.spw
        la, lb = [], []
        for mi in range(self.MI):
            off = sb + (0 if self.xor else mi * 32 * self.rowA)
            if self.afrag:
                off = sb + (ks * (self.TM // 32) + mi) * 1024
            r = self.aA[(w, ks, mi if self.xor else 0)]
            la.append(f"ds_read_b128 {vr(self.X[buf][mi], 4)}, v{r} offset:{off - w * self.wsz}")
        for ni in range(self.NI):
            for r2 in range(2):
                off = sb + self.Ab + ks * 16 * self.rowB + r2 * (8 if self.perm else 4) * self.rowB
                r = self.aB[(w, ni)]
                lb.append(f"ds_read_b64_tr_b16 {vr(self.W[buf][ni] + 2 * r2, 2)}, v{r} offset:{off - w * self.wsz}")
        if 'r' in DBG and self.afrag:
            return []
        return la[:1] + lb + la[1:]

    def core(self, own_dma, extra=None):
        k = self.k
        nst = len(self.stages)
        spS = self.KS * self.SUB
        nm = self.MI * self.NI
        NB = self.NBUF
        LA = NB - 1
        assert LA <= spS
        total = nst * spS
        nrd = self.MI + 2 * self.NI
        seen = set()
        pend, rate, credit = [], 0.0, 0.0
        if own_dma:
            k.stamp(4, "pro")
            k.wait_vm(("dma", id(self), 0))
            for st in range(self.npro, min(self.NS, nst)):
                pend += self.dma_ops(st)
            rate = len(pend) / float(nm * max(spS - LA, 1))
        k.e("s_barrier")
        k.stamp(2)
        k.stamp(5, "pro")
        if self.stamp_ids:
            k.stamp(self.stamp_ids[0], "mid")
        for g in range(LA):
            for r in self.read_list(0, g, g % NB):
                k.e(r)
        for g in range(total):
            st, step = divmod(g, spS)
            tg = g + LA
            rl = []
            if tg < total:
                tst, tstep = divmod(tg, spS)
                if tstep == 0:
                    w = ""
                    if own_dma:
                        for o in pend:
                            self.emit_op(o)
                        pend = []
                        w = f"vmcnt({k.vm_count_after(('dma', id(self), tst))}) "
                    k.e(f"s_waitcnt {w}lgkmcnt(0)")
                    if self.stage_stamps:
                        k.stamp(1 + tst, "stg")
                    k.e("s_barrier")
                    if own_dma and tst - 1 + self.NS < nst:
                        pend = self.dma_ops(tst - 1 + self.NS)
                        rate = len(pend) / float(nm * spS)
                        credit = 0.5
                else:
                    k.e(f"s_waitcnt lgkmcnt({min((LA - 1) * nrd, 15)})")
                rl = self.read_list(tst, tstep, tg % NB)
            else:
                k.e(f"s_waitcnt lgkmcnt({max(total - 1 - g, 0) * nrd})")
            si, ko = self.stages[st][step // self.KS]
            accid = self.segs[si].acc
            first = accid not in seen
            seen.add(accid)
            per = max(2, -(-len(rl) // max(nm - 2, 1))) if nm > 1 else len(rl)
            for mi in range(self.MI):
                for ni in range(self.NI):
                    if not ('m' in DBG and self.afrag and g > 1):
                        k.e(self.mfma(st, step, g % NB, mi, ni, first))
                    for _ in range(per):
                        if rl:
                            k.e(rl.pop(0))
                    credit += rate
                    while pend and credit >= 1.0:
                        self.emit_op(pend.pop(0))
                        credit -= 1.0
            assert not rl
            if extra:
                for x in extra(st, step, g % NB, g):
                    k.e(x)
        k.stamp(3)
        if self.stamp_ids:
            k.stamp(self.stamp_ids[1], "mid")

    def run(self, extra=None):
        self.core(True, extra)

    def run_compute(self, extra=None):
        self.core(False, extra)

    def mfma(self, st, step, buf, mi, ni, first):
        si, ko = self.stages[st][step // self.KS]
        a = self.acc[self.segs[si].acc][mi][ni]
        x, w = vr(self.X[buf][mi], 4), vr(self.W[buf][ni], 4)
        c = "0" if first else vr(a, 16)
        if (self.swapped[ni] if isinstance(self.swapped, (list, tuple)) else self.swapped):
            return f"v_mfma_f32_32x32x16_bf16 {vr(a, 16)}, {w}, {x}, {c}"
        return f"v_mfma_f32_32x32x16_bf16 {vr(a, 16)}, {x}, {w}, {c}"

    def prologue_dma(self, n=None):
        n = min(self.NS, len(self.stages)) if n is None else n
        self.npro = n
        self.k.stamp(2, "pro")
        for st in range(n):
            for o in self.dma_ops(st):
                self.emit_op(o)
        self.k.stamp(3, "pro")

    def run_loader(self, after_prologue=None):
        k = self.k
        nst = len(self.stages)
        npro = min(self.lpro, self.NS, nst)
        for st in range(npro):
            for o in self.dma_ops(st):
                self.emit_op(o)
        nxt = npro
        done = False
        for st in range(nst):
            if after_prologue and not done and nxt >= nst:
                after_prologue()
                done = True
            k.wait_vm(("dma", id(self), st))
            k.e("s_barrier")
            while nxt < nst and nxt <= st - 1 + self.NS:
                for o in self.dma_ops(nxt):
                    self.emit_op(o)
                nxt += 1
```

```python
import os
from asmlib import *
from common import *
from gemm import *
from attn_ring import attn_role

GK = dict(wave_v=2, lane_v=1, s_row0=32, s_col0=33, s_wave=34, stmp=28, stmp2=76)
GKS = dict(GK, nloaders=4, lwave_v=3, s_lwave=82)
ACQ = bool(os.environ.get('ACQ'))
LF = '' if ACQ else ' sc1'
NB64 = int(os.environ.get('NB64', '4'))
SCR = 65536

def pf_dma(k, srd_, vl16, s_off, n):
    if 'p' in os.environ.get('GDBG', ''):
        return
    k.e(f"s_mov_b32 m0, {SCR}")
    k.e("s_nop 0")
    for i in range(n):
        k.vmem(f"buffer_load_dwordx4 v{vl16}, {sr(srd_, 4)}, s{s_off} offen lds", "pf")
        if i + 1 < n:
            k.e(f"s_add_u32 s{s_off}, s{s_off}, 1024")

def publish(k, srdF, s_off, vz, vone):
    e = k.e
    e("s_barrier")
    lab = k.newlabel("pub")
    e("s_cmp_lg_u32 s34, 0")
    e(f"s_cbranch_scc1 {lab}")
    e(f"v_mov_b32 v{vz}, 0")
    e(f"v_mov_b32 v{vone}, 1")
    e("s_mov_b64 exec, 1")
    e(f"buffer_store_dword v{vone}, v{vz}, {sr(srdF, 4)}, s{s_off} offen sc1")
    e("s_mov_b64 exec, -1")
    k.label(lab)

def wait_flags(k, srdF, s_off, n, va4, vf):
    e = k.e
    lab, loop, done = k.newlabel("wf"), k.newlabel("wfl"), k.newlabel("wfd")
    e("s_cmp_lg_u32 s34, 0")
    e(f"s_cbranch_scc1 {lab}")
    e(f"v_lshlrev_b32 v{va4}, 2, v1")
    e(f"s_mov_b32 s66, {hx((1 << n) - 1)}")
    e("s_mov_b32 s67, 0")
    e("s_mov_b32 s65, 0")
    e("s_mov_b64 exec, s[66:67]")
    k.label(loop)
    e(f"buffer_load_dword v{vf}, v{va4}, {sr(srdF, 4)}, s{s_off} offen sc1")
    e("s_waitcnt vmcnt(0)")
    e(f"v_cmp_ne_u32 vcc, 0, v{vf}")
    e("s_add_u32 s65, s65, 1")
    e("s_cmp_eq_u64 vcc, s[66:67]")
    e(f"s_cbranch_scc1 {done}")
    e("s_sleep 4")
    e("s_cmp_lt_u32 s65, 0x100000")
    e(f"s_cbranch_scc1 {loop}")
    k.label(done)
    e("s_mov_b64 exec, -1")
    if ACQ:
        e("buffer_inv sc1")
        e("s_waitcnt vmcnt(0)")
    k.label(lab)
    e("s_barrier")

def tile64_ids(k):
    e = k.e
    e("s_lshl_b32 s37, s35, 2")
    e("s_and_b32 s38, s36, 3")
    e("s_add_u32 s70, s37, s38")
    e("s_lshr_b32 s71, s36, 2")
    e("s_lshl_b32 s32, s70, 6")
    e("s_lshl_b32 s33, s71, 6")
    e("s_lshl_b32 s37, s38, 1")
    e("s_add_u32 s79, s37, s71")
    e("s_and_b32 s79, s79, 7")

def tile64_addr(k, vK, vT, vN, t1):
    e = k.e
    e("s_lshr_b32 s37, s34, 1")
    e("s_and_b32 s38, s34, 1")
    e("s_lshl_b32 s39, s37, 5")
    e("s_add_u32 s39, s39, s32")
    e(f"v_and_b32 v{vK}, 31, v1")
    e(f"v_add_u32 v{vK}, s39, v{vK}")
    e(f"v_lshlrev_b32 v{vT}, 10, v{vK}")
    e("s_lshl_b32 s81, s39, 5")
    e("s_lshl_b32 s39, s38, 5")
    e("s_add_u32 s39, s39, s33")
    e("s_lshl_b32 s80, s39, 12")
    e("s_add_u32 s80, s80, s81")
    e("s_add_u32 s81, s80, 0x10000")
    e("s_lshl_b32 s39, s39, 1")
    e(f"v_add_u32 v{vT}, s39, v{vT}")
    e(f"v_lshrrev_b32 v{t1}, 5, v1")
    e(f"v_lshl_add_u32 v{vN}, v{t1}, 3, v{vT}")
    e(f"v_lshlrev_b32 v{vT}, 4, v1")

def chain_role(k):
    e = k.e
    nm = k.name
    maxv = 0
    CP = os.environ.get('GPRIO', '2')
    LP = os.environ.get('LPRIO', '0')
    e(f"s_setprio {CP}")
    e("v_and_b32 v3, 3, v2")
    e("s_and_b32 s82, s34, 3")
    tile64_ids(k)
    e("s_waitcnt lgkmcnt(0)")
    k.stamp(1)
    srd(k, 4, P_WS, WS_H, MB2)
    srd(k, 8, P_W2, 0, 512 * 512 * 2)
    srd(k, 12, P_WS, WS_X1, MB2)
    srd(k, 16, P_X, 0, MB2)
    srd(k, 20, P_WS, WS_PST, 2048 * 128)
    srd(k, 24, P_WS, WS_PG, 2048 * 64)
    srd(k, 64, P_GATE, 0, 1024)
    srd(k, 72, P_WS, WS_FLG, 4096)
    va = VAlloc(4)
    g = Gemm(k, va, 64, 64, 2, 2, 4, 1, [Seg(512, 4, 1024, 8, 1024, rot=79, dynshift=True)], True, True, afrag=True, NBUF=NB64, **GKS)
    g.alloc()
    vT, vK, t0, t1, t2 = va.a(), va.a(), va.a(), va.a(), va.a()
    ss, sq, sg, sg2 = va.a(), va.a(), va.a(), va.a()
    xr = va.a(8, 4)
    gr = va.a(8, 4)
    pk = [va.a(4, 4), va.a(4, 4)]
    e("s_cmp_ge_u32 s34, 4")
    e(f"s_cbranch_scc1 L_{nm}_A_ld")
    tile64_addr(k, vK, vT, t0, t1)
    e(f"v_lshlrev_b32 v{t2}, 3, v{t1}")
    for q in range(4):
        e(f"buffer_load_dwordx2 {vr(xr + 2 * q, 2)}, v{t0}, s[16:19], 0 offen offset:{q * 16}")
    for q in range(4):
        e(f"buffer_load_dwordx2 {vr(gr + 2 * q, 2)}, v{t2}, s[64:67], s39 offen offset:{q * 16}")
    g.setup_reads()
    g.stamp_ids = (2, 3)
    g.run_compute()
    e("s_waitcnt vmcnt(0)")
    e(f"v_mov_b32 v{ss}, 0")
    e(f"v_mov_b32 v{sq}, 0")
    e(f"v_mov_b32 v{sg}, 0")
    e(f"v_mov_b32 v{sg2}, 0")
    e("s_nop 7")
    a = g.acc[0][0][0]
    for q in range(4):
        for d in range(2):
            i = 4 * q + 2 * d
            x_, g_ = xr + 2 * q + d, gr + 2 * q + d
            e(f"v_lshlrev_b32 v{t0}, 16, v{x_}")
            e(f"v_and_b32 v{t1}, 0xffff0000, v{x_}")
            e(f"v_lshlrev_b32 v{t2}, 16, v{g_}")
            e(f"v_and_b32 v{g_}, 0xffff0000, v{g_}")
            e(f"v_add_f32 v{a+i}, v{a+i}, v{t0}")
            e(f"v_add_f32 v{a+i+1}, v{a+i+1}, v{t1}")
            e(f"v_fmac_f32 v{sg}, v{t0}, v{t2}")
            e(f"v_fmac_f32 v{sg2}, v{t1}, v{g_}")
            e(f"v_add_f32 v{ss}, v{ss}, v{a+i}")
            e(f"v_fmac_f32 v{sq}, v{a+i}, v{a+i}")
            e(f"v_add_f32 v{ss}, v{ss}, v{a+i+1}")
            e(f"v_fmac_f32 v{sq}, v{a+i+1}, v{a+i+1}")
    for hf in range(2):
        pack8(k, a + hf * 8, pk[hf])
        e(f"buffer_store_dwordx4 {vr(pk[hf], 4)}, v{vT}, s[12:15], s{80 + hf} offen sc1")
    e(f"v_add_f32 v{sg}, v{sg}, v{sg2}")
    e(f"v_lshrrev_b32 v{t1}, 5, v1")
    e(f"v_mov_b32 v{sg2}, v{sg}")
    e(f"v_and_b32 v{t0}, 31, v1")
    e(f"v_lshlrev_b32 v{t2}, 4, v{t0}")
    e(f"v_lshl_add_u32 v{t0}, v{t1}, 2, v{t2}")
    e(f"v_permlane32_swap_b32 v{ss}, v{sq}")
    e(f"v_permlane32_swap_b32 v{sg}, v{sg2}")
    e("s_lshl_b32 s39, s70, 1")
    e("s_add_u32 s39, s39, s37")
    e("s_lshl_b32 s68, s39, 3")
    e("s_add_u32 s68, s68, s71")
    e("s_lshl_b32 s68, s68, 9")
    e("s_lshl_b32 s69, s38, 3")
    e("s_add_u32 s68, s68, s69")
    e("s_lshl_b32 s69, s39, 2")
    e("s_lshr_b32 s39, s71, 1")
    e("s_add_u32 s69, s69, s39")
    e("s_lshl_b32 s69, s69, 9")
    e("s_and_b32 s39, s71, 1")
    e("s_lshl_b32 s39, s39, 1")
    e("s_add_u32 s39, s39, s38")
    e("s_lshl_b32 s39, s39, 2")
    e("s_add_u32 s69, s69, s39")
    e(f"v_add_f32 v{ss}, v{ss}, v{sq}")
    e(f"v_add_f32 v{sg}, v{sg}, v{sg2}")
    e(f"buffer_store_dword v{ss}, v{t0}, s[20:23], s68 offen sc1")
    e(f"buffer_store_dword v{sg}, v{t2}, s[24:27], s69 offen")
    e("s_waitcnt vmcnt(0)")
    e(f"s_branch L_{nm}_A_join")
    k.label(f"L_{nm}_A_ld")
    k.vm = []
    g.setup_dma()
    e(f"s_setprio {os.environ.get('LAPRIO', CP)}")
    def pfA():
        e(f"s_setprio {LP}")
        srd(k, 16, P_W3, 0, 512 * 1792 * 2)
        e("s_lshl_b32 s64, s36, 2")
        e("s_add_u32 s64, s64, s82")
        e("s_mul_i32 s64, s64, 14336")
        e(f"v_lshlrev_b32 v{t0}, 4, v1")
        pf_dma(k, 16, t0, 64, 14)
    g.run_loader(pfA)
    k.label(f"L_{nm}_A_join")
    e("s_lshr_b32 s64, s70, 1")
    e("s_lshl_b32 s64, s64, 7")
    e("s_and_b32 s65, s70, 1")
    e("s_lshl_b32 s65, s65, 3")
    e("s_add_u32 s65, s65, s71")
    e("s_lshl_b32 s65, s65, 2")
    e("s_add_u32 s64, s64, s65")
    publish(k, 72, 64, t0, t1)
    k.stamp(4, "mid")
    maxv = max(maxv, va.n)
    lds = g.lds_bytes
    lab = k.newlabel("pf4")
    e("s_cmp_lt_u32 s34, 4")
    e(f"s_cbranch_scc1 {lab}")
    srd(k, 16, P_W4, 0, 1792 * 512 * 2)
    e("s_lshl_b32 s64, s36, 2")
    e("s_add_u32 s64, s64, s82")
    e("s_mul_i32 s64, s64, 14336")
    e(f"v_lshlrev_b32 v{t0}, 4, v1")
    pf_dma(k, 16, t0, 64, 14)
    k.label(lab)
    e(f"s_setprio {LP}")
    e("s_cmp_ge_u32 s36, 28")
    e(f"s_cbranch_scc1 L_{nm}_B_skip")
    k.vm = []
    BK = 32
    e("s_lshl_b32 s37, s35, 1")
    e("s_and_b32 s38, s36, 1")
    e("s_add_u32 s70, s37, s38")
    e("s_lshr_b32 s71, s36, 1")
    e("s_lshl_b32 s32, s70, 7")
    e("s_lshl_b32 s33, s71, 7")
    e("s_lshl_b32 s37, s38, 2")
    e("s_add_u32 s79, s37, s71")
    e("s_and_b32 s79, s79, 7")
    e("s_lshl_b32 s79, s79, 1")
    srd(k, 4, P_WS, WS_X1, MB2)
    srd(k, 8, P_W3, 0, 512 * 1792 * 2)
    srd(k, 12, P_WS, WS_H3, H3_BYTES)
    srd(k, 16, P_WS, WS_PST, 2048 * 128)
    srd(k, 20, P_WS, WS_CS3, 1792 * 4)
    va = VAlloc(4)
    g = Gemm(k, va, 128, 128, 4, 2, 4, 1, [Seg(512, 4, 1024, 8, 3584, rot=79)], True, True, BK=BK, afrag=True, **GK)
    g.alloc()
    g.segs[0].aflag = LF
    csr = [va.a(16, 4), va.a(16, 4)]
    ps = va.a(16, 4)
    mean = [va.a(2, 2)]
    rstd = [va.a(2, 2)]
    vO = [va.a()]
    g.setup_dma()
    g.setup_reads()
    t0, t1, vP, vC = g.t[0:4]
    e("s_lshr_b32 s37, s34, 1")
    e("s_and_b32 s38, s34, 1")
    e("s_lshl_b32 s39, s37, 5")
    e("s_add_u32 s39, s39, s32")
    e(f"v_and_b32 v{t0}, 31, v1")
    e(f"v_lshlrev_b32 v{vP}, 4, v{t0}")
    e(f"v_add_u32 v{t0}, s39, v{t0}")
    e(f"v_lshrrev_b32 v{t1}, 5, v1")
    e(f"v_lshl_add_u32 v{vP}, v{t1}, 11, v{vP}")
    e("s_lshr_b32 s80, s39, 5")
    e("s_lshl_b32 s80, s80, 12")
    e("s_lshl_b32 s64, s38, 6")
    e("s_add_u32 s64, s64, s33")
    e("s_lshl_b32 s81, s64, 2")
    e(f"v_lshlrev_b32 v{vC}, 4, v{t1}")
    e(f"v_lshlrev_b32 v{vO[0]}, 4, v1")
    e("s_lshl_b32 s68, s64, 12")
    e("s_add_u32 s69, s68, 0x20000")
    e("s_lshl_b32 s83, s39, 5")
    e("s_lshl_b32 s64, s70, 7")
    wait_flags(k, 72, 64, 16, g.t[4], g.t[5])
    k.stamp(5, "mid")
    g.stamp_ids = (6, 7)
    g.dma_prio = (LP, CP)
    pre = []
    for c in range(4):
        pre.append(f"buffer_load_dwordx4 {vr(ps + 4 * c, 4)}, v{vP}, s[16:19], s80 offen offset:{c * 512}{LF}")
    for ni in range(2):
        for q in range(4):
            pre.append(f"buffer_load_dwordx4 {vr(csr[ni] + 4 * q, 4)}, v{vC}, s[20:23], s81 offen offset:{ni * 128 + q * 32}")
    def extra(st, step, buf, gs):
        if gs >= 8 and pre:
            k.vmem(pre.pop(0), "pre")
        return []
    g.prologue_dma(int(os.environ.get("NPROB", "3")))
    g.run(extra)
    assert not pre
    e("s_waitcnt vmcnt(0)")
    e(f"v_add_f32 v{mean[0]}, v{ps}, v{ps + 2}")
    e(f"v_add_f32 v{rstd[0]}, v{ps + 1}, v{ps + 3}")
    for c in range(2, 8):
        e(f"v_add_f32 v{mean[0]}, v{mean[0]}, v{ps + 2 * c}")
        e(f"v_add_f32 v{rstd[0]}, v{rstd[0]}, v{ps + 2 * c + 1}")
    e(f"v_mov_b32 v{mean[0] + 1}, v{mean[0]}")
    e(f"v_mov_b32 v{rstd[0] + 1}, v{rstd[0]}")
    e("s_nop 1")
    e(f"v_permlane32_swap_b32 v{mean[0]}, v{mean[0] + 1}")
    e(f"v_permlane32_swap_b32 v{rstd[0]}, v{rstd[0] + 1}")
    e("s_nop 1")
    e(f"v_add_f32 v{mean[0]}, v{mean[0]}, v{mean[0] + 1}")
    e(f"v_add_f32 v{rstd[0]}, v{rstd[0]}, v{rstd[0] + 1}")
    rstd_from_sums(k, mean[0], rstd[0])
    assert g.W[1][1] + 4 - g.X[0][0] == 24
    ln_gelu_store(k, g, va, csr, mean, rstd, vO[0], (83,), (68, 69), 65, 12, scratch=g.X[0][0], cls="!")
    e("s_waitcnt vmcnt(0)")
    e("s_lshl_b32 s64, s70, 7")
    e("s_lshl_b32 s65, s71, 2")
    e("s_add_u32 s64, s64, s65")
    e("s_add_u32 s64, s64, 2048")
    e(f"s_setprio {LP}")
    publish(k, 72, 64, g.t[4], g.t[5])
    e(f"s_branch L_{nm}_B_done")
    k.label(f"L_{nm}_B_skip")
    k.label(f"L_{nm}_B_done")
    k.stamp(8, "mid")
    maxv = max(maxv, va.n)
    lds = max(lds, g.lds_bytes)
    k.vm = []
    tile64_ids(k)
    e("s_mul_i32 s79, s79, 7")
    e("s_lshr_b32 s79, s79, 1")
    srd(k, 4, P_WS, WS_H3, H3_BYTES)
    srd(k, 8, P_W4, 0, 1792 * 512 * 2)
    srd(k, 12, P_WS, WS_BB, MB2)
    srd(k, 16, P_WS, WS_X1, MB2)
    va = VAlloc(4)
    g = Gemm(k, va, 64, 64, 2, 2, 4, 1, [Seg(1792, 4, 3584, 8, 1024, rot=79)], True, True, afrag=True, NBUF=NB64, **GKS)
    g.alloc()
    g.segs[0].aflag = LF
    vT, vK, t0, t1 = va.a(), va.a(), va.a(), va.a()
    xr = va.a(8, 4)
    pk = [va.a(4, 4), va.a(4, 4)]
    e("s_lshr_b32 s64, s70, 1")
    e("s_lshl_b32 s64, s64, 7")
    e("s_add_u32 s83, s64, 2048")
    e("s_cmp_ge_u32 s34, 4")
    e(f"s_cbranch_scc1 L_{nm}_C_ld")
    tile64_addr(k, vK, vT, t0, t1)
    g.setup_reads()
    wait_flags(k, 72, 83, 14, t0, t1)
    k.stamp(9, "mid")
    e(f"s_setprio {CP}")
    for hf in range(2):
        e(f"buffer_load_dwordx4 {vr(xr + 4 * hf, 4)}, v{vT}, s[16:19], s{80 + hf} offen{LF}")
    g.run_compute()
    e("s_waitcnt vmcnt(0)")
    e("s_nop 7")
    e("s_nop 3")
    a = g.acc[0][0][0]
    for i2 in range(8):
        e(f"v_lshlrev_b32 v{t0}, 16, v{xr + i2}")
        e(f"v_and_b32 v{t1}, 0xffff0000, v{xr + i2}")
        e(f"v_add_f32 v{a + 2 * i2}, v{a + 2 * i2}, v{t0}")
        e(f"v_add_f32 v{a + 2 * i2 + 1}, v{a + 2 * i2 + 1}, v{t1}")
    for hf in range(2):
        pack8(k, a + hf * 8, pk[hf])
        e(f"buffer_store_dwordx4 {vr(pk[hf], 4)}, v{vT}, s[12:15], s{80 + hf} offen")
    e(f"s_branch L_{nm}_fin")
    k.label(f"L_{nm}_C_ld")
    k.vm = []
    g.setup_dma()
    e("s_barrier")
    k.stamp(9, "mid")
    def pfC():
        srd(k, 16, P_WO, 0, 512 * 512 * 2)
        e("s_lshl_b32 s64, s36, 2")
        e("s_add_u32 s64, s64, s82")
        e("s_lshl_b32 s64, s64, 12")
        e(f"v_lshlrev_b32 v{t0}, 4, v1")
        pf_dma(k, 16, t0, 64, 4)
    g.run_loader(pfC)
    e(f"s_branch L_{nm}_fin")
    maxv = max(maxv, va.n)
    lds = max(lds, g.lds_bytes)
    assert lds <= SCR
    return maxv, SCR + 1024

def gen_mid():
    k = K("mid_kernel")
    e = k.e
    head(k, 512, fused=True)
    e("s_cmp_eq_u32 s33, 0")
    e(f"s_cbranch_scc1 L_mid_attn")
    if os.environ.get("NOGEMM"):
        e("s_branch L_mid_kernel_end")
    n1, l1 = chain_role(k)
    k.label("L_mid_attn")
    k.vm = []
    va = VAlloc(4)
    l2 = attn_role(k, va, "mid_a")
    tail(k)
    return k, max(n1, va.n), max(l1, l2)

def gen_g5():
    k = K("g5_kernel")
    e = k.e
    head(k, 256)
    tile64_ids(k)
    e("s_lshr_b32 s79, s79, 1")
    e("s_waitcnt lgkmcnt(0)")
    k.stamp(1)
    srd(k, 4, P_WS, WS_O, MB2)
    srd(k, 8, P_WO, 0, 512 * 512 * 2)
    srd(k, 12, P_OUT, 0, MB2)
    srd(k, 16, P_WS, WS_BB, MB2)
    srd(k, 64, P_WS, WS_PG, 2048 * 64)
    va = VAlloc(4)
    g = Gemm(k, va, 64, 64, 2, 2, 4, 2, [Seg(512, 4, 1024, 8, 1024, rot=79)], True, True, afrag=True, NBUF=NB64, **GK)
    g.alloc()
    g.setup_dma()
    g.prologue_dma(4)
    vT, vN, vK, t0, t1, vg, vg1 = [va.a() for _ in range(7)]
    xr = va.a(8, 4)
    pg = va.a(8, 4)
    pk = va.a(8, 4)
    tile64_addr(k, vK, vT, vN, t1)
    e(f"v_and_b32 v{t0}, 31, v1")
    e(f"v_lshlrev_b32 v{t0}, 4, v{t0}")
    e(f"v_lshl_add_u32 v{t0}, v{t1}, 10, v{t0}")
    e("s_lshl_b32 s39, s70, 1")
    e("s_add_u32 s39, s39, s37")
    e("s_lshl_b32 s39, s39, 11")
    for c in range(2):
        k.vmem(f"buffer_load_dwordx4 {vr(pg + 4 * c, 4)}, v{t0}, s[64:67], s39 offen offset:{c * 512}", "epi")
    for hf in range(2):
        k.vmem(f"buffer_load_dwordx4 {vr(xr + 4 * hf, 4)}, v{vT}, s[16:19], s{80 + hf} offen", "epi")
    g.setup_reads()
    g.run()
    e("s_waitcnt vmcnt(0)")
    for i in range(1, 8):
        e(f"v_add_f32 v{pg}, v{pg}, v{pg + i}")
    e(f"v_mov_b32 v{vg}, v{pg}")
    e("s_nop 1")
    e(f"v_permlane32_swap_b32 v{vg}, v{pg}")
    e("s_nop 1")
    e(f"v_add_f32 v{vg}, v{vg}, v{pg}")
    e(f"v_mul_f32 v{vg}, {fl(-LOG2E)}, v{vg}")
    e(f"v_exp_f32 v{vg}, v{vg}")
    e("s_nop 0")
    e(f"v_add_f32 v{vg}, 1.0, v{vg}")
    e(f"v_rcp_f32 v{vg}, v{vg}")
    e("s_nop 0")
    e(f"v_sub_f32 v{vg1}, 1.0, v{vg}")
    a = g.acc[0][0][0]
    for i2 in range(8):
        i = 2 * i2
        e(f"v_lshlrev_b32 v{t0}, 16, v{xr + i2}")
        e(f"v_and_b32 v{t1}, 0xffff0000, v{xr + i2}")
        e(f"v_mul_f32 v{t0}, v{t0}, v{vg1}")
        e(f"v_mul_f32 v{t1}, v{t1}, v{vg1}")
        e(f"v_fmac_f32 v{t0}, v{a+i}, v{vg}")
        e(f"v_fmac_f32 v{t1}, v{a+i+1}, v{vg}")
        e(f"v_cvt_pk_bf16_f32 v{pk + i2}, v{t0}, v{t1}")
    for q in range(4):
        e(f"buffer_store_dwordx2 {vr(pk + 2 * q, 2)}, v{vN}, s[12:15], 0 offen offset:{q * 16}")
    tail(k)
    return k, va.n, g.lds_bytes
```

```python
import sys, math, os
from asmlib import *
from common import *
from gemm import *
from attn8 import attn_role

GK = dict(wave_v=2, lane_v=1, s_row0=32, s_col0=33, s_wave=34, stmp=28, stmp2=76)
NPRO = int(os.environ.get('NPRO', '2'))

def w1_path(k, va, srdA, srdB, srdO):
    g = Gemm(k, va, 128, 128, 2, 2, 4, 1, [Seg(512, srdA, 1024, srdB, 1024, rot=79)], False, True, xorroles=True, **GK)
    g.alloc()
    STAT = g.lds_bytes
    s1, s2, cs, dm = va.a(), va.a(), va.a(), va.a()
    ones = va.a()
    e = k.e
    g.setup_dma()
    g.prologue_dma(NPRO)
    g.setup_reads()
    for r in (s1, s2, cs):
        e(f"v_mov_b32 v{r}, 0")
    e(f"v_mov_b32 v{ones}, 0x3f803f80")
    def extra(st, step, buf, gs):
        l = []
        x = g.X[buf][0]
        w = g.W[buf][0]
        for i in range(4):
            l.append(f"v_dot2c_f32_bf16 v{s2}, v{x+i}, v{x+i}")
            l.append(f"v_dot2c_f32_bf16 v{s1}, v{x+i}, v{ones}")
            l.append(f"v_dot2c_f32_bf16 v{cs}, v{w+i}, v{ones}")
        return l
    g.run(extra)
    t = g.t
    e("s_lshr_b32 s37, s34, 1")
    e("s_and_b32 s38, s34, 1")
    e("s_nop 3")
    e(f"v_mov_b32 v{dm}, v{cs}")
    e(f"v_and_b32 v{t[0]}, 31, v1")
    e(f"v_lshrrev_b32 v{t[1]}, 5, v1")
    e(f"v_permlane32_swap_b32 v{s1}, v{s2}")
    e(f"v_permlane32_swap_b32 v{dm}, v{cs}")
    e("s_lshl_b32 s39, s37, 8")
    e("s_lshl_b32 s64, s38, 7")
    e(f"v_add_f32 v{s1}, v{s1}, v{s2}")
    e(f"v_add_f32 v{cs}, v{dm}, v{cs}")
    e("s_add_u32 s39, s39, s64")
    e("s_lshl_b32 s64, s38, 8")
    e("s_lshl_b32 s65, s37, 7")
    e("s_add_u32 s64, s64, s65")
    e(f"s_add_u32 s39, s39, {STAT}")
    e(f"s_add_u32 s64, s64, {STAT + 1024}")
    e(f"v_lshlrev_b32 v{t[2]}, 2, v{t[0]}")
    e(f"v_lshl_add_u32 v{t[3]}, v{t[1]}, 9, v{t[2]}")
    e(f"v_add_u32 v{t[3]}, s39, v{t[3]}")
    e(f"ds_write_b32 v{t[3]}, v{s1}")
    e(f"v_add_u32 v{t[4]}, s64, v{t[2]}")
    e(f"ds_write_b32 v{t[4]}, v{cs}")
    e("s_waitcnt lgkmcnt(0)")
    e("s_barrier")
    csr = [va.a(16, 4), va.a(16, 4)]
    mean = [va.a(2, 2), va.a(2, 2)]
    rstd = [va.a(2, 2), va.a(2, 2)]
    vO = [va.a(), va.a()]
    for mi in range(2):
        e(f"s_xor_b32 s64, s38, {mi}")
        e("s_lshl_b32 s64, s64, 5")
        e("s_lshl_b32 s65, s37, 6")
        e("s_add_u32 s64, s64, s65")
        e("s_lshl_b32 s65, s64, 2")
        e(f"s_add_u32 s65, s65, {STAT}")
        e(f"v_add_u32 v{t[3]}, s65, v{t[2]}")
        e(f"ds_read_b32 v{mean[mi]}, v{t[3]}")
        e(f"ds_read_b32 v{rstd[mi]}, v{t[3]} offset:512")
        e("s_add_u32 s64, s64, s32")
        e(f"s_lshl_b32 s{80 + mi}, s64, 5")
    for ni in range(2):
        e(f"s_xor_b32 s64, s37, {ni}")
        e("s_lshl_b32 s64, s64, 7")
        e("s_lshl_b32 s65, s38, 8")
        e("s_add_u32 s64, s64, s65")
        e(f"s_add_u32 s64, s64, {STAT + 1024}")
        e(f"v_lshlrev_b32 v{t[3]}, 4, v{t[1]}")
        e(f"v_add_u32 v{t[3]}, s64, v{t[3]}")
        for q in range(4):
            e(f"ds_read_b128 {vr(csr[ni] + 4 * q, 4)}, v{t[3]} offset:{q * 32}")
        e(f"s_xor_b32 s{68 + ni}, s37, {ni}")
        e(f"s_lshl_b32 s{68 + ni}, s{68 + ni}, 5")
        e("s_lshl_b32 s65, s38, 6")
        e(f"s_add_u32 s{68 + ni}, s{68 + ni}, s65")
        e(f"s_add_u32 s{68 + ni}, s{68 + ni}, s33")
        e(f"s_lshl_b32 s{68 + ni}, s{68 + ni}, 12")
    e("s_waitcnt lgkmcnt(0)")
    for mi in range(2):
        rstd_from_sums(k, mean[mi], rstd[mi])
    e(f"v_lshlrev_b32 v{vO[0]}, 4, v1")
    ln_gelu_store(k, g, va, csr, mean, rstd, vO[0], (80, 81), (68, 69), 64, srdO)
    return STAT + 2048

def gen_g1():
    k = K("g1_kernel")
    e = k.e
    head(k, 256)
    e("s_and_b32 s37, s35, 3")
    e("s_lshl_b32 s37, s37, 2")
    e("s_and_b32 s38, s36, 3")
    e("s_add_u32 s70, s37, s38")
    e("s_lshr_b32 s37, s35, 2")
    e("s_lshl_b32 s37, s37, 3")
    e("s_lshr_b32 s38, s36, 2")
    e("s_add_u32 s71, s37, s38")
    e("s_lshl_b32 s32, s70, 7")
    e("s_and_b32 s72, s71, 3")
    e("s_lshr_b32 s73, s71, 2")
    e("s_and_b32 s37, s36, 3")
    e("s_lshl_b32 s37, s37, 1")
    e("s_add_u32 s79, s37, s38")
    e("s_and_b32 s79, s79, 7")
    e("s_waitcnt lgkmcnt(0)")
    k.stamp(1)
    srd(k, 4, P_X, 0, MB2)
    e("s_cmp_eq_u32 s73, 3")
    e(f"s_cbranch_scc1 L_g1_w1")
    srd(k, 8, P_WQKV, 0, 512 * 1536 * 2)
    e("s_lshl_b32 s33, s71, 7")
    e("s_lshl_b32 s37, s73, 21")
    e(f"s_add_u32 s12, s{P_WS}, s37")
    e(f"s_addc_u32 s13, s{P_WS+1}, 0")
    e(f"s_mov_b32 s14, {hx(MB2)}")
    e("s_mov_b32 s15, 0x20000")
    srd(k, 16, P_WS, WS_KN, 4096)
    e("s_lshr_b32 s37, s34, 1")
    e("s_and_b32 s38, s34, 1")
    e("s_lshl_b32 s74, s72, 19")
    e("s_lshl_b32 s39, s38, 18")
    e("s_add_u32 s74, s74, s39")
    e("s_lshl_b32 s39, s70, 12")
    e("s_add_u32 s74, s74, s39")
    e("s_lshl_b32 s39, s37, 11")
    e("s_add_u32 s74, s74, s39")
    e("s_cmp_eq_u32 s73, 2")
    e("s_cbranch_scc1 L_g1_v")
    maxv = 0
    lds = 0
    va = VAlloc(4)
    g = Gemm(k, va, 128, 128, 2, 2, 4, 1, [Seg(512, 4, 1024, 8, 3072, rot=79)], False, True, **GK)
    g.alloc()
    g.setup_dma()
    g.prologue_dma(NPRO)
    g.setup_reads()
    g.run()
    lds = max(lds, g.lds_bytes)
    vS = va.a()
    pk = [va.a(4, 4), va.a(4, 4)]
    nr = va.a(8, 4)
    e(f"v_lshlrev_b32 v{vS}, 4, v1")
    e("s_nop 7")
    e("s_nop 3")
    e("s_cmp_eq_u32 s73, 1")
    e("s_cbranch_scc1 L_g1_kepi")
    cnt = 0
    for ni in range(2):
        for hf in range(2):
            e(f"s_add_u32 s75, s74, {hx((ni * 2 + hf) << 16)}")
            for mi in range(2):
                a = g.acc[0][mi][ni] + hf * 8
                for i in range(8):
                    e(f"v_mul_f32 v{a+i}, {fl(QSCALE)}, v{a+i}")
                p = pk[cnt & 1]; cnt += 1
                pack8(k, a, p)
                e(f"buffer_store_dwordx4 {vr(p, 4)}, v{vS}, s[12:15], s75 offen offset:{mi * 1024}{sc('q')}")
    e("s_branch L_g1_pf")
    k.label("L_g1_kepi")
    for ni in range(2):
        for hf in range(2):
            e(f"s_add_u32 s75, s74, {hx((ni * 2 + hf) << 16)}")
            hh = ni * 2 + hf
            for mi in range(2):
                a = g.acc[0][mi][ni] + hf * 8
                p = pk[cnt & 1]; cnt += 1
                pack8(k, a, p)
                e(f"buffer_store_dwordx4 {vr(p, 4)}, v{vS}, s[12:15], s75 offen offset:{mi * 1024}{sc('q')}")
                n = nr + mi * 4 + hh
                e(f"v_mul_f32 v{n}, v{a}, v{a}")
                for i in range(1, 8):
                    e(f"v_fmac_f32 v{n}, v{a+i}, v{a+i}")
    e("s_nop 1")
    for hh in range(4):
        e(f"v_permlane32_swap_b32 v{nr+hh}, v{nr+4+hh}")
    e("s_nop 1")
    for hh in range(4):
        e(f"v_add_f32 v{nr+hh}, v{nr+hh}, v{nr+4+hh}")
    for dpp in DPP_MAX:
        e("s_nop 1")
        for hh in range(4):
            e(f"v_max_f32_dpp v{nr+hh}, v{nr+hh}, v{nr+hh} {dpp}")
    e("s_lshl_b32 s75, s70, 1")
    e("s_add_u32 s75, s75, s37")
    e("s_lshl_b32 s75, s75, 7")
    e("s_lshl_b32 s39, s72, 5")
    e("s_add_u32 s75, s75, s39")
    e("s_lshl_b32 s39, s38, 4")
    e("s_add_u32 s75, s75, s39")
    e(f"v_mov_b32 v{vS}, 0")
    e("s_mov_b32 s66, 0")
    e("s_mov_b32 s67, 0x80000000")
    e("s_mov_b64 exec, s[66:67]")
    e(f"buffer_store_dwordx4 {vr(nr, 4)}, v{vS}, s[16:19], s75 offen")
    e("s_branch L_g1_pf")
    maxv = max(maxv, va.n)
    k.label("L_g1_v")
    k.vm = []
    va = VAlloc(4)
    g = Gemm(k, va, 128, 128, 2, 2, 4, 1, [Seg(512, 4, 1024, 8, 3072, rot=79)], False, False, **GK)
    g.alloc()
    g.setup_dma()
    g.prologue_dma(NPRO)
    g.setup_reads()
    g.run()
    vS = va.a()
    tt = va.a()
    pk = [va.a(4, 4), va.a(4, 4)]
    e(f"v_bfe_u32 v{vS}, v1, 4, 1")
    e(f"v_lshlrev_b32 v{vS}, 16, v{vS}")
    e(f"v_lshrrev_b32 v{tt}, 5, v1")
    e(f"v_lshl_add_u32 v{vS}, v{tt}, 8, v{vS}")
    e(f"v_and_b32 v{tt}, 15, v1")
    e(f"v_lshl_add_u32 v{vS}, v{tt}, 4, v{vS}")
    e("s_nop 7")
    cnt = 0
    for ni in range(2):
        e(f"s_add_u32 s75, s74, {hx((ni * 2) << 16)}")
        for mi in range(2):
            for tq in range(2):
                a = g.acc[0][mi][ni] + tq * 8
                p = pk[cnt & 1]; cnt += 1
                pack8(k, a, p)
                e(f"buffer_store_dwordx4 {vr(p, 4)}, v{vS}, s[12:15], s75 offen offset:{mi * 1024 + tq * 512}{sc('q')}")
    e("s_branch L_g1_pf")
    maxv = max(maxv, va.n)
    k.label("L_g1_w1")
    k.vm = []
    srd(k, 8, P_W1, 0, 512 * 512 * 2)
    srd(k, 12, P_WS, WS_H, MB2)
    e("s_lshl_b32 s33, s72, 7")
    va = VAlloc(4)
    l2 = w1_path(k, va, 4, 8, 12)
    lds = max(lds, l2)
    maxv = max(maxv, va.n)
    k.label("L_g1_pf")
    e("s_mov_b64 exec, -1")
    srd(k, 4, P_W2, 0, 512 * 512 * 2)
    e("s_lshl_b32 s64, s36, 2")
    e("s_add_u32 s64, s64, s34")
    e("s_lshl_b32 s64, s64, 12")
    e("v_lshlrev_b32 v3, 4, v1")
    prefetch(k, 4, 3, 4, 64, 4)
    e("s_cmp_lg_u32 s73, 0")
    e(f"s_cbranch_scc1 L_{k.name}_fin")
    e("s_lshl_b32 s39, s70, 2")
    e("s_add_u32 s39, s39, s72")
    e("s_cmp_lt_u32 s39, 28")
    e("s_cbranch_scc1 L_g1_cs")
    e("s_cmp_lg_u32 s39, 63")
    e(f"s_cbranch_scc1 L_{k.name}_fin")
    srd(k, 12, P_WS, WS_FLG, 4096)
    for i in range(8, 12):
        e(f"v_mov_b32 v{i}, 0")
    e("v_lshlrev_b32 v3, 4, v0")
    e("buffer_store_dwordx4 v[8:11], v3, s[12:15], 0 offen")
    e(f"s_branch L_{k.name}_fin")
    k.label("L_g1_cs")
    colsum_job(k, 8, 40, 48, 49, 50)
    tail(k)
    return k, maxv, lds

def colsum_job(k, ld, ac, t0, t1, t2):
    e = k.e
    srd(k, 8, P_W3, 0, 512 * 1792 * 2)
    srd(k, 12, P_WS, WS_CS3, 1792 * 4)
    e(f"v_lshrrev_b32 v{t0}, 3, v0")
    e(f"v_mul_u32_u24 v{t0}, 3584, v{t0}")
    e(f"v_and_b32 v{t1}, 7, v0")
    e(f"v_lshl_add_u32 v{t0}, v{t1}, 4, v{t0}")
    e("s_lshl_b32 s68, s39, 7")
    for i in range(8):
        e(f"v_mov_b32 v{ac + i}, 0")
    for bt in range(2):
        for j in range(8):
            e(f"buffer_load_dwordx4 {vr(ld + 4 * j, 4)}, v{t0}, s[8:11], s68 offen")
            e(f"s_add_u32 s68, s68, {32 * 3584}")
        for j in range(8):
            e(f"s_waitcnt vmcnt({7 - j})")
            for d in range(4):
                e(f"v_lshlrev_b32 v{t1}, 16, v{ld + 4 * j + d}")
                e(f"v_and_b32 v{t2}, 0xffff0000, v{ld + 4 * j + d}")
                e(f"v_add_f32 v{ac + 2 * d}, v{ac + 2 * d}, v{t1}")
                e(f"v_add_f32 v{ac + 2 * d + 1}, v{ac + 2 * d + 1}, v{t2}")
    e("s_barrier")
    e(f"v_lshlrev_b32 v{t0}, 5, v0")
    e(f"ds_write_b128 v{t0}, {vr(ac, 4)}")
    e(f"ds_write_b128 v{t0}, {vr(ac + 4, 4)} offset:16")
    e("s_waitcnt lgkmcnt(0)")
    e("s_barrier")
    e("s_cmp_lg_u32 s34, 0")
    e(f"s_cbranch_scc1 L_{k.name}_fin")
    e(f"v_lshlrev_b32 v{t0}, 2, v1")
    for r in range(32):
        e(f"ds_read_b32 v{ld + r}, v{t0} offset:{r * 256}")
        if r % 8 == 7:
            e("s_waitcnt lgkmcnt(0)")
    for r in range(1, 32):
        e(f"v_add_f32 v{ld}, v{ld}, v{ld + r}")
    e("s_lshl_b32 s68, s39, 8")
    e(f"buffer_store_dword v{ld}, v{t0}, s[12:15], s68 offen")

def tile64_ids(k):
    e = k.e
    e("s_lshl_b32 s37, s35, 2")
    e("s_and_b32 s38, s36, 3")
    e("s_add_u32 s70, s37, s38")
    e("s_lshr_b32 s71, s36, 2")
    e("s_lshl_b32 s32, s70, 6")
    e("s_lshl_b32 s33, s71, 6")
    e("s_lshl_b32 s37, s38, 1")
    e("s_add_u32 s79, s37, s71")
    e("s_and_b32 s79, s79, 7")

def g2_role(k, va, NS, NB):
    e = k.e
    e("s_cmp_ge_u32 s34, 4")
    e(f"s_cbranch_scc1 L_{k.name}_end")
    tile64_ids(k)
    e("s_waitcnt lgkmcnt(0)")
    k.stamp(1)
    srd(k, 4, P_WS, WS_H, MB2)
    srd(k, 8, P_W2, 0, 512 * 512 * 2)
    srd(k, 12, P_WS, WS_X1, MB2)
    srd(k, 16, P_X, 0, MB2)
    srd(k, 20, P_WS, WS_PST, 2048 * 128)
    srd(k, 24, P_WS, WS_PG, 2048 * 64)
    srd(k, 64, P_GATE, 0, 1024)
    segs = [Seg(512, 4, 1024, 8, 1024, rot=79, dynshift=True)]
    g = Gemm(k, va, 64, 64, 2, 2, NS, 1, segs, True, True, **GK)
    g.alloc()
    g.setup_dma()
    g.prologue_dma(NPRO)
    vT, vK, t0, t1, t2 = va.a(), va.a(), va.a(), va.a(), va.a()
    ss, sq, sg, sg2 = va.a(), va.a(), va.a(), va.a()
    xr = va.a(8, 4)
    gr = va.a(8, 4)
    pk = [va.a(4, 4), va.a(4, 4)]
    e("s_lshr_b32 s37, s34, 1")
    e("s_and_b32 s38, s34, 1")
    e("s_lshl_b32 s39, s37, 5")
    e("s_add_u32 s39, s39, s32")
    e(f"v_and_b32 v{vK}, 31, v1")
    e(f"v_add_u32 v{vK}, s39, v{vK}")
    e(f"v_lshlrev_b32 v{vT}, 10, v{vK}")
    e("s_lshl_b32 s39, s38, 5")
    e("s_add_u32 s39, s39, s33")
    e("s_lshl_b32 s39, s39, 1")
    e(f"v_add_u32 v{vT}, s39, v{vT}")
    e(f"v_lshrrev_b32 v{t1}, 5, v1")
    e(f"v_lshl_add_u32 v{t0}, v{t1}, 3, v{vT}")
    e(f"v_lshl_add_u32 v{vT}, v{t1}, 4, v{vT}")
    e(f"v_lshlrev_b32 v{t2}, 3, v{t1}")
    for q in range(4):
        k.vmem(f"buffer_load_dwordx2 {vr(xr + 2 * q, 2)}, v{t0}, s[16:19], 0 offen offset:{q * 16}", "xres")
    for q in range(4):
        k.vmem(f"buffer_load_dwordx2 {vr(gr + 2 * q, 2)}, v{t2}, s[64:67], s39 offen offset:{q * 16}", "xres")
    g.setup_reads()
    g.run()
    k.wait_vm("xres")
    e(f"v_mov_b32 v{ss}, 0")
    e(f"v_mov_b32 v{sq}, 0")
    e(f"v_mov_b32 v{sg}, 0")
    e(f"v_mov_b32 v{sg2}, 0")
    e("s_nop 7")
    a = g.acc[0][0][0]
    for q in range(4):
        for d in range(2):
            i = 4 * q + 2 * d
            x_, g_ = xr + 2 * q + d, gr + 2 * q + d
            e(f"v_lshlrev_b32 v{t0}, 16, v{x_}")
            e(f"v_and_b32 v{t1}, 0xffff0000, v{x_}")
            e(f"v_lshlrev_b32 v{t2}, 16, v{g_}")
            e(f"v_and_b32 v{g_}, 0xffff0000, v{g_}")
            e(f"v_add_f32 v{a+i}, v{a+i}, v{t0}")
            e(f"v_add_f32 v{a+i+1}, v{a+i+1}, v{t1}")
            e(f"v_fmac_f32 v{sg}, v{t0}, v{t2}")
            e(f"v_fmac_f32 v{sg2}, v{t1}, v{g_}")
            e(f"v_add_f32 v{ss}, v{ss}, v{a+i}")
            e(f"v_fmac_f32 v{sq}, v{a+i}, v{a+i}")
            e(f"v_add_f32 v{ss}, v{ss}, v{a+i+1}")
            e(f"v_fmac_f32 v{sq}, v{a+i+1}, v{a+i+1}")
    for hf in range(2):
        pack8(k, a + hf * 8, pk[hf])
        e(f"buffer_store_dwordx4 {vr(pk[hf], 4)}, v{vT}, s[12:15], 0 offen offset:{hf * 32}{sc('x')}")
    e(f"v_add_f32 v{sg}, v{sg}, v{sg2}")
    e(f"v_lshrrev_b32 v{t1}, 5, v1")
    e(f"v_mov_b32 v{sg2}, v{sg}")
    e(f"v_and_b32 v{t0}, 31, v1")
    e(f"v_lshlrev_b32 v{t2}, 4, v{t0}")
    e(f"v_lshl_add_u32 v{t0}, v{t1}, 2, v{t2}")
    e(f"v_permlane32_swap_b32 v{ss}, v{sq}")
    e(f"v_permlane32_swap_b32 v{sg}, v{sg2}")
    e("s_lshl_b32 s39, s70, 1")
    e("s_add_u32 s39, s39, s37")
    e("s_lshl_b32 s68, s39, 3")
    e("s_add_u32 s68, s68, s71")
    e("s_lshl_b32 s68, s68, 9")
    e("s_lshl_b32 s69, s38, 3")
    e("s_add_u32 s68, s68, s69")
    e("s_lshl_b32 s69, s39, 2")
    e("s_lshr_b32 s39, s71, 1")
    e("s_add_u32 s69, s69, s39")
    e("s_lshl_b32 s69, s69, 9")
    e("s_and_b32 s39, s71, 1")
    e("s_lshl_b32 s39, s39, 1")
    e("s_add_u32 s39, s39, s38")
    e("s_lshl_b32 s39, s39, 2")
    e("s_add_u32 s69, s69, s39")
    e(f"v_add_f32 v{ss}, v{ss}, v{sq}")
    e(f"v_add_f32 v{sg}, v{sg}, v{sg2}")
    e(f"buffer_store_dword v{ss}, v{t0}, s[20:23], s68 offen")
    e(f"buffer_store_dword v{sg}, v{t2}, s[24:27], s69 offen")
    srd(k, 8, P_W3, 0, 512 * 1792 * 2)
    srd(k, 4, P_WS, WS_K, 2 * MB2)
    e("s_lshl_b32 s64, s36, 2")
    e("s_add_u32 s64, s64, s34")
    e("s_mul_i32 s65, s64, 14336")
    e(f"v_lshlrev_b32 v{t0}, 4, v1")
    prefetch(k, 8, t0, g.X[0][0], 65, 14)
    if NB:
        e("s_lshr_b32 s65, s64, 5")
        e("s_lshl_b32 s66, s35, 2")
        e("s_add_u32 s65, s65, s66")
        e("s_lshl_b32 s65, s65, 16")
        e("s_and_b32 s66, s64, 31")
        e("s_lshl_b32 s66, s66, 10")
        e("s_add_u32 s65, s65, s66")
        e(f"s_add_u32 s65, s65, {(64 - NB) * 1024}")
        e(f"s_add_u32 s66, s65, {MB2}")
        for rep in range((NB + 31) // 32):
            e(f"buffer_load_dwordx4 {vr(g.X[0][0], 4)}, v{t0}, s[4:7], s65 offen")
            e(f"buffer_load_dwordx4 {vr(g.X[0][0], 4)}, v{t0}, s[4:7], s66 offen")
            if (rep + 1) * 32 < NB:
                e("s_add_u32 s65, s65, 32768")
                e("s_add_u32 s66, s66, 32768")
    e("s_lshl_b32 s39, s36, 3")
    e("s_add_u32 s39, s39, s35")
    e("s_cmp_ge_u32 s39, 28")
    e(f"s_cbranch_scc1 L_{k.name}_fin")
    srd(k, 12, P_WS, WS_CS3, 1792 * 4)
    ld = va.a(32, 4)
    ac = va.a(8, 4)
    assert va.n <= 128
    e(f"v_lshrrev_b32 v{t0}, 3, v0")
    e(f"v_mul_u32_u24 v{t0}, 3584, v{t0}")
    e(f"v_and_b32 v{t1}, 7, v0")
    e(f"v_lshl_add_u32 v{t0}, v{t1}, 4, v{t0}")
    e("s_lshl_b32 s68, s39, 7")
    for i in range(8):
        e(f"v_mov_b32 v{ac + i}, 0")
    for bt in range(2):
        for j in range(8):
            e(f"buffer_load_dwordx4 {vr(ld + 4 * j, 4)}, v{t0}, s[8:11], s68 offen")
            e(f"s_add_u32 s68, s68, {32 * 3584}")
        for j in range(8):
            e(f"s_waitcnt vmcnt({7 - j})")
            for d in range(4):
                e(f"v_lshlrev_b32 v{t1}, 16, v{ld + 4 * j + d}")
                e(f"v_and_b32 v{t2}, 0xffff0000, v{ld + 4 * j + d}")
                e(f"v_add_f32 v{ac + 2 * d}, v{ac + 2 * d}, v{t1}")
                e(f"v_add_f32 v{ac + 2 * d + 1}, v{ac + 2 * d + 1}, v{t2}")
    e("s_barrier")
    e(f"v_lshlrev_b32 v{t0}, 5, v0")
    e(f"ds_write_b128 v{t0}, {vr(ac, 4)}")
    e(f"ds_write_b128 v{t0}, {vr(ac + 4, 4)} offset:16")
    e("s_waitcnt lgkmcnt(0)")
    e("s_barrier")
    e("s_cmp_lg_u32 s34, 0")
    e(f"s_cbranch_scc1 L_{k.name}_fin")
    e(f"v_lshlrev_b32 v{t0}, 2, v1")
    for r in range(32):
        e(f"ds_read_b32 v{ld + r}, v{t0} offset:{r * 256}")
        if r % 8 == 7:
            e("s_waitcnt lgkmcnt(0)")
    for r in range(1, 32):
        e(f"v_add_f32 v{ld}, v{ld}, v{ld + r}")
    e("s_lshl_b32 s68, s39, 8")
    e(f"buffer_store_dword v{ld}, v{t0}, s[12:15], s68 offen")
    e(f"s_branch L_{k.name}_fin")
    return max(g.lds_bytes, 8192)

def g3_role(k, va, NS, BK):
    e = k.e
    e("s_lshl_b32 s37, s35, 1")
    e("s_and_b32 s38, s36, 1")
    e("s_add_u32 s70, s37, s38")
    e("s_lshr_b32 s71, s36, 1")
    e("s_lshl_b32 s32, s70, 7")
    e("s_lshl_b32 s33, s71, 7")
    e("s_lshl_b32 s37, s38, 2")
    e("s_add_u32 s79, s37, s71")
    e("s_and_b32 s79, s79, 7")
    if BK == 32:
        e("s_lshl_b32 s79, s79, 1")
    e("s_waitcnt lgkmcnt(0)")
    k.stamp(1)
    e("s_cmp_ge_u32 s36, 28")
    e(f"s_cbranch_scc1 L_{k.name}_pf")
    srd(k, 4, P_WS, WS_X1, MB2)
    srd(k, 8, P_W3, 0, 512 * 1792 * 2)
    srd(k, 12, P_WS, WS_H3, H3_BYTES)
    srd(k, 16, P_WS, WS_PST, 2048 * 128)
    srd(k, 20, P_WS, WS_CS3, 1792 * 4)
    g = Gemm(k, va, 128, 128, 4, 2, NS, 1, [Seg(512, 4, 1024, 8, 3584, rot=79)], True, True, BK=BK, **GK)
    g.alloc()
    g.setup_dma()
    g.prologue_dma(NPRO)
    g.setup_reads()
    csr = [va.a(16, 4), va.a(16, 4)]
    ps = va.a(16, 4)
    mean = [va.a(2, 2)]
    rstd = [va.a(2, 2)]
    vO = [va.a()]
    t0, t1, vP, vC = g.t[0:4]
    e("s_lshr_b32 s37, s34, 1")
    e("s_and_b32 s38, s34, 1")
    e("s_lshl_b32 s39, s37, 5")
    e("s_add_u32 s39, s39, s32")
    e(f"v_and_b32 v{t0}, 31, v1")
    e(f"v_lshlrev_b32 v{vP}, 4, v{t0}")
    e(f"v_add_u32 v{t0}, s39, v{t0}")
    e(f"v_lshrrev_b32 v{t1}, 5, v1")
    e(f"v_lshl_add_u32 v{vP}, v{t1}, 11, v{vP}")
    e("s_lshr_b32 s66, s39, 5")
    e("s_lshl_b32 s66, s66, 12")
    e("s_lshl_b32 s64, s38, 6")
    e("s_add_u32 s64, s64, s33")
    e("s_lshl_b32 s72, s64, 2")
    e(f"v_lshlrev_b32 v{vC}, 4, v{t1}")
    pre = []
    for c in range(4):
        pre.append(f"buffer_load_dwordx4 {vr(ps + 4 * c, 4)}, v{vP}, s[16:19], s66 offen offset:{c * 512}")
    for ni in range(2):
        for q in range(4):
            pre.append(f"buffer_load_dwordx4 {vr(csr[ni] + 4 * q, 4)}, v{vC}, s[20:23], s72 offen offset:{ni * 128 + q * 32}")
    def extra(st, step, buf, gs):
        if gs >= 8 and pre:
            k.vmem(pre.pop(0), "pre")
        return []
    e("s_movk_i32 s65, 3584")
    e(f"v_mul_lo_u32 v{vO[0]}, v{t0}, s65")
    e(f"v_lshl_add_u32 v{vO[0]}, v{t1}, 4, v{vO[0]}")
    e("s_lshl_b32 s64, s64, 1")
    e(f"v_add_u32 v{vO[0]}, s64, v{vO[0]}")
    e("s_mov_b32 s68, 0")
    e("s_mov_b32 s69, 64")
    def pf34():
        srd(k, 4, P_W4, 0, 1792 * 512 * 2)
        srd(k, 8, P_WO, 0, 512 * 512 * 2)
        e("s_lshl_b32 s64, s36, 3")
        e("s_add_u32 s64, s64, s34")
        e("s_mul_i32 s65, s64, 7168")
        e("s_lshl_b32 s66, s64, 11")
        e(f"v_lshlrev_b32 v{t0}, 4, v1")
        prefetch(k, 4, t0, pfd, 65, 7)
        prefetch(k, 8, t0, pfd, 66, 2)
    pfd = ps
    g.run(extra)
    assert not pre
    e("s_waitcnt vmcnt(0)")
    e(f"s_setprio {os.environ.get('EPRIO', '1')}")
    e(f"v_add_f32 v{mean[0]}, v{ps}, v{ps + 2}")
    e(f"v_add_f32 v{rstd[0]}, v{ps + 1}, v{ps + 3}")
    for c in range(2, 8):
        e(f"v_add_f32 v{mean[0]}, v{mean[0]}, v{ps + 2 * c}")
        e(f"v_add_f32 v{rstd[0]}, v{rstd[0]}, v{ps + 2 * c + 1}")
    pf34()
    e(f"v_mov_b32 v{mean[0] + 1}, v{mean[0]}")
    e(f"v_mov_b32 v{rstd[0] + 1}, v{rstd[0]}")
    e("s_nop 1")
    e(f"v_permlane32_swap_b32 v{mean[0]}, v{mean[0] + 1}")
    e(f"v_permlane32_swap_b32 v{rstd[0]}, v{rstd[0] + 1}")
    e("s_nop 1")
    e(f"v_add_f32 v{mean[0]}, v{mean[0]}, v{mean[0] + 1}")
    e(f"v_add_f32 v{rstd[0]}, v{rstd[0]}, v{rstd[0] + 1}")
    rstd_from_sums(k, mean[0], rstd[0])
    assert g.W[1][1] + 4 - g.X[0][0] == 24
    ln_gelu_store(k, g, va, csr, mean, rstd, vO, (68, 69), 12, scratch=g.X[0][0], cls='3')
    e(f"s_branch L_{k.name}_fin")
    k.label(f"L_{k.name}_pf")
    pf34()
    e(f"s_branch L_{k.name}_fin")
    return g.lds_bytes

def gen_fused(name, attn_args, gemm_fn):
    k = K(name)
    e = k.e
    head(k, 512, fused=True)
    e("s_cmp_eq_u32 s33, 0")
    e(f"s_cbranch_scc1 L_{name}_attn")
    if os.environ.get("NOGEMM"):
        e(f"s_branch L_{name}_end")
    e(f"s_setprio {os.environ.get('GPRIO', '1')}")
    va = VAlloc(4)
    l1 = gemm_fn(k, va)
    n1 = va.n
    k.label(f"L_{name}_attn")
    k.vm = []
    va = VAlloc(4)
    l2 = attn_role(k, va, *attn_args, px=name + "_a")
    tail(k)
    return k, max(n1, va.n), max(l1, l2)

def gen_g4():
    k = K("g4_kernel")
    e = k.e
    head(k, 256)
    tile64_ids(k)
    e("s_waitcnt lgkmcnt(0)")
    k.stamp(1)
    srd(k, 4, P_WS, WS_H3, H3_BYTES)
    srd(k, 8, P_W4, 0, 1792 * 512 * 2)
    srd(k, 12, P_OUT, 0, MB2)
    srd(k, 16, P_WS, WS_X1, MB2)
    srd(k, 20, P_WS, WS_O, MB2)
    srd(k, 24, P_WO, 0, 512 * 512 * 2)
    srd(k, 64, P_WS, WS_PG, 2048 * 64)
    va = VAlloc(4)
    e("s_mul_i32 s80, s79, 7")
    e("s_lshr_b32 s80, s80, 2")
    e("s_lshr_b32 s81, s79, 1")
    segs = [Seg(1792, 4, 3584, 8, 1024, acc=0, rot=80), Seg(512, 20, 1024, 24, 1024, acc=1, rot=81)]
    g = Gemm(k, va, 64, 64, 2, 2, 4, 2, segs, True, True, **GK)
    g.alloc()
    g.setup_dma()
    g.prologue_dma(NPRO)
    vT, vN, t0, t1, vg, vg1 = va.a(), va.a(), va.a(), va.a(), va.a(), va.a()
    xr = va.a(8, 4)
    pg = va.a(8, 4)
    pk = va.a(8, 4)
    e("s_lshr_b32 s37, s34, 1")
    e("s_and_b32 s38, s34, 1")
    e("s_lshl_b32 s39, s37, 5")
    e("s_add_u32 s39, s39, s32")
    e(f"v_and_b32 v{t0}, 31, v1")
    e(f"v_add_u32 v{t0}, s39, v{t0}")
    e(f"v_lshlrev_b32 v{vT}, 10, v{t0}")
    e(f"v_lshrrev_b32 v{t1}, 5, v1")
    e(f"v_and_b32 v{t0}, 31, v1")
    e(f"v_lshlrev_b32 v{t0}, 4, v{t0}")
    e(f"v_lshl_add_u32 v{t0}, v{t1}, 10, v{t0}")
    e("s_lshr_b32 s39, s39, 5")
    e("s_lshl_b32 s39, s39, 11")
    for c in range(2):
        k.vmem(f"buffer_load_dwordx4 {vr(pg + 4 * c, 4)}, v{t0}, s[64:67], s39 offen offset:{c * 512}", "epi")
    e("s_lshl_b32 s39, s38, 5")
    e("s_add_u32 s39, s39, s33")
    e("s_lshl_b32 s39, s39, 1")
    e(f"v_add_u32 v{vT}, s39, v{vT}")
    e(f"v_lshl_add_u32 v{vN}, v{t1}, 3, v{vT}")
    e(f"v_lshl_add_u32 v{vT}, v{t1}, 4, v{vT}")
    for hf in range(2):
        k.vmem(f"buffer_load_dwordx4 {vr(xr + 4 * hf, 4)}, v{vT}, s[16:19], 0 offen offset:{hf * 32}", "epi")
    g.setup_reads()
    g.run()
    e("s_waitcnt vmcnt(0)")
    for i in range(1, 8):
        e(f"v_add_f32 v{pg}, v{pg}, v{pg + i}")
    e(f"v_mov_b32 v{vg}, v{pg}")
    e("s_nop 1")
    e(f"v_permlane32_swap_b32 v{vg}, v{pg}")
    e("s_nop 1")
    e(f"v_add_f32 v{vg}, v{vg}, v{pg}")
    e(f"v_mul_f32 v{vg}, {fl(-LOG2E)}, v{vg}")
    e(f"v_exp_f32 v{vg}, v{vg}")
    e("s_nop 0")
    e(f"v_add_f32 v{vg}, 1.0, v{vg}")
    e(f"v_rcp_f32 v{vg}, v{vg}")
    e("s_nop 0")
    e(f"v_sub_f32 v{vg1}, 1.0, v{vg}")
    b = g.acc[0][0][0]
    a = g.acc[1][0][0]
    for i2 in range(8):
        i = 2 * i2
        e(f"v_lshlrev_b32 v{t0}, 16, v{xr + i2}")
        e(f"v_and_b32 v{t1}, 0xffff0000, v{xr + i2}")
        e(f"v_add_f32 v{b+i}, v{b+i}, v{t0}")
        e(f"v_add_f32 v{b+i+1}, v{b+i+1}, v{t1}")
        e(f"v_mul_f32 v{b+i}, v{b+i}, v{vg1}")
        e(f"v_mul_f32 v{b+i+1}, v{b+i+1}, v{vg1}")
        e(f"v_fmac_f32 v{b+i}, v{a+i}, v{vg}")
        e(f"v_fmac_f32 v{b+i+1}, v{a+i+1}, v{vg}")
        e(f"v_cvt_pk_bf16_f32 v{pk + i2}, v{b+i}, v{b+i+1}")
    for q in range(4):
        e(f"buffer_store_dwordx2 {vr(pk + 2 * q, 2)}, v{vN}, s[12:15], 0 offen offset:{q * 16}{sc('z')}")
    tail(k)
    return k, va.n, g.lds_bytes

def build():
    from mid import gen_mid, gen_g5
    import g1 as g1m
    ks = [g1m.gen_g1(), gen_mid()]
    geo = {"g1_kernel": (256, 512), "mid_kernel": (512, 512), "g5_kernel": (256, 256)}
    hdr = open("gated_mix__mha_block__mixer_s_mlp__prompt.s.ref").read().split("; Override")[0]
    out = hdr
    for k, nv, lds in ks:
        out += f"; @launch kernel={k.name} grid=({geo[k.name][0]},1,1) block=({geo[k.name][1]},1,1) lds={lds}\n"
    out += '.amdgcn_target "amdgcn-amd-amdhsa--gfx950"\n'
    for k, nv, lds in ks:
        assert nv <= (128 if geo[k.name][0] == 512 else 256), (k.name, nv)
        out += kernel_text(k, nv)
    return out

if __name__ == "__main__":
    K.STAMP = bool(os.environ.get("STAMP"))
    K.MODE = os.environ.get("STAMPMODE", "")
    dst = sys.argv[1] if len(sys.argv) > 1 else "gated_mix__mha_block__mixer_s_mlp__prompt.s"
    open(dst, "w").write(build())
```

```python
import os
from asmlib import *
from common import *

def attn_role(k, va, px):
    e = k.e
    CH, NCH, NT = 8, 8, 64
    RING = 4 * CH * 1024
    VOFF = RING
    e("s_setprio 3")
    e("s_lshl_b32 s37, s35, 2")
    e("s_lshr_b32 s38, s36, 3")
    e("s_add_u32 s70, s37, s38")
    e("s_and_b32 s71, s36, 7")
    Q = va.a(4, 4)
    C = va.a(16, 4)
    S = [va.a(16, 4), va.a(16, 4)]
    O = va.a(16, 4)
    P = va.a(8, 4)
    Kf = [va.a(4, 4), va.a(4, 4)]
    Vf = [[va.a(4, 4), va.a(4, 4)], [va.a(4, 4), va.a(4, 4)]]
    vD, vKa, vKn, vVa, vVl, vL16, t0, t1, t2 = [va.a() for _ in range(9)]
    vkn = t2
    e(f"v_lshlrev_b32 v{vKa}, 4, v1")
    e(f"v_lshlrev_b32 v{vL16}, 4, v1")
    e(f"v_add_u32 v{vKn}, {CH * 1024}, v{vKa}")
    e("s_lshl_b32 s72, s70, 16")
    e("s_lshl_b32 s73, s34, 10")
    e("s_waitcnt lgkmcnt(0)")
    k.stamp(1)
    srd(k, 4, P_WS, WS_K, MB2)
    srd(k, 8, P_WS, WS_V, MB2)
    srd(k, 12, P_WS, WS_Q, MB2)
    srd(k, 16, P_WS, WS_KN, 4096)
    srd(k, 20, P_WS, WS_O, MB2)
    e("s_add_u32 s74, s72, s73")
    e("s_mov_b32 s75, s73")
    def dma_chunk():
        e("s_mov_b32 m0, s75")
        e("s_nop 0")
        e(f"buffer_load_dwordx4 v{vL16}, s[4:7], s74 offen lds")
        e(f"s_add_u32 m0, s75, {VOFF}")
        e("s_nop 0")
        e(f"buffer_load_dwordx4 v{vL16}, s[8:11], s74 offen lds")
        e(f"s_add_u32 s74, s74, {CH * 1024}")
        e(f"s_add_u32 s75, s75, {CH * 1024}")
        e(f"s_and_b32 s75, s75, {RING - 1}")
    e("s_lshl_b32 s37, s71, 13")
    e("s_add_u32 s37, s37, s72")
    e("s_add_u32 s37, s37, s73")
    e(f"buffer_load_dwordx4 {vr(Q, 4)}, v{vL16}, s[12:15], s37 offen")
    e(f"v_and_b32 v{t0}, 31, v1")
    e(f"v_lshlrev_b32 v{t0}, 7, v{t0}")
    e("s_lshl_b32 s38, s70, 2")
    e(f"buffer_load_dword v{vkn}, v{t0}, s[16:19], s38 offen")
    dma_chunk()
    dma_chunk()
    e(f"v_lshrrev_b32 v{t0}, 5, v1")
    e(f"v_and_b32 v{t1}, 15, v1")
    e(f"v_lshlrev_b32 v{vVl}, 4, v{t1}")
    e(f"v_lshl_add_u32 v{vVl}, v{t0}, 8, v{vVl}")
    e(f"v_add_u32 v{vVa}, {VOFF}, v{vVl}")
    for b in range(2):
        for t in range(2):
            for i in range(4):
                e(f"v_mov_b32 v{Vf[b][t] + i}, 0x3f803f80")
    for i in range(8):
        e(f"v_mov_b32 v{P + i}, 0")
    for i in range(16):
        e(f"v_mov_b32 v{O + i}, 0")
    e("s_mov_b32 s76, 0xffff")
    e("s_mov_b32 s77, 0xffff")
    e(f"v_mov_b32 v{t0}, 0")
    e(f"s_waitcnt vmcnt(4)")
    for i in range(4):
        e(f"v_dot2c_f32_bf16 v{t0}, v{Q + i}, v{Q + i}")
    for dpp in DPP_MAX:
        e("s_nop 1")
        e(f"v_max_f32_dpp v{vkn}, v{vkn}, v{vkn} {dpp}")
    e(f"v_mov_b32 v{t1}, v{t0}")
    e("s_nop 1")
    e(f"v_readlane_b32 s78, v{vkn}, 63")
    e(f"v_permlane32_swap_b32 v{t0}, v{t1}")
    e("s_nop 1")
    e(f"v_add_f32 v{t0}, v{t0}, v{t1}")
    e(f"v_mul_f32 v{t0}, s78, v{t0}")
    e(f"v_sqrt_f32 v{t0}, v{t0}")
    e("s_nop 0")
    e(f"v_mul_f32 v{t0}, {fl(-1.01)}, v{t0}")
    for i in range(16):
        e(f"v_mov_b32 v{C + i}, v{t0}")
    e(f"s_waitcnt vmcnt(2)")
    e("s_barrier")
    k.stamp(2, "mid")
    e(f"ds_read_b128 {vr(Kf[0], 4)}, v{vKa}")
    e(f"ds_read_b128 {vr(Kf[1], 4)}, v{vKa} offset:1024")
    e("s_waitcnt lgkmcnt(1)")
    e(f"v_mfma_f32_32x32x16_bf16 {vr(S[0], 16)}, {vr(Kf[0], 4)}, {vr(Q, 4)}, {vr(C, 16)}")
    dma_chunk()
    e(f"s_mov_b32 s79, 0")
    e(f"s_setprio {os.environ.get('APRIO', '1')}")
    e("s_nop 7")
    k.label(f"L_{px}_loop")
    for u in range(CH):
        if u == 5:
            e("s_waitcnt vmcnt(0)")
            e("s_barrier")
            e(f"s_cmp_lt_u32 s79, {NCH - 3}")
            e(f"s_cbranch_scc1 L_{px}_refill")
            k.label(f"L_{px}_refilled")
        b = u % 2
        pv = [f"v_mfma_f32_32x32x16_bf16 {vr(O, 16)}, {vr(Vf[b ^ 1][t], 4)}, {vr(P + 4 * t, 4)}, {vr(O, 16)}" for t in range(2)]
        qk = f"v_mfma_f32_32x32x16_bf16 {vr(S[b ^ 1], 16)}, {vr(Kf[b ^ 1], 4)}, {vr(Q, 4)}, {vr(C, 16)}"
        s = S[b]
        e("s_waitcnt lgkmcnt(0)")
        e(pv[0])
        if u + 2 < CH:
            e(f"ds_read_b128 {vr(Kf[b], 4)}, v{vKa} offset:{(u + 2) * 1024}")
        else:
            e(f"ds_read_b128 {vr(Kf[b], 4)}, v{vKn} offset:{(u + 2 - CH) * 1024}")
        e("s_mov_b64 exec, s[76:77]")
        e(f"ds_read_b128 {vr(Vf[b][0], 4)}, v{vVa} offset:{u * 1024}")
        e(f"ds_read_b128 {vr(Vf[b][1], 4)}, v{vVa} offset:{u * 1024 + 512}")
        e("s_mov_b64 exec, -1")
        for i in range(16):
            e(f"v_exp_f32 v{s + i}, v{s + i}")
            if i == 9:
                e(pv[1])
            if i >= 2 and i % 2 == 0:
                e(f"v_cvt_pk_bf16_f32 v{P + i // 2 - 1}, v{s + i - 2}, v{s + i - 1}")
            if i == 4:
                e(qk)
        if u == CH - 1:
            e(f"v_add_u32 v{vVa}, {VOFF}, v{vKn}")
        else:
            e("s_nop 0")
        e(f"v_cvt_pk_bf16_f32 v{P + 7}, v{s + 14}, v{s + 15}")
    e(f"v_sub_u32 v{vVa}, v{vVa}, v{vL16}")
    e(f"v_mov_b32 v{vKa}, v{vKn}")
    e(f"v_add_u32 v{vVa}, v{vVa}, v{vVl}")
    e(f"v_add_u32 v{vKn}, {CH * 1024}, v{vKn}")
    e(f"v_and_b32 v{vKn}, {RING - 1}, v{vKn}")
    if K.STAMP and K.MODE == "mid":
        e("s_memtime s[100:101]")
        e("s_waitcnt lgkmcnt(0)")
        for it in range(7):
            e(f"s_cmp_eq_u32 s79, {it}")
            e(f"s_cselect_b32 s{87 + it}, s100, s{87 + it}")
    e("s_add_u32 s79, s79, 1")
    e(f"s_cmp_lt_u32 s79, {NCH}")
    e(f"s_cbranch_scc1 L_{px}_loop")
    e("s_waitcnt lgkmcnt(0)")
    for t in range(2):
        e(f"v_mfma_f32_32x32x16_bf16 {vr(O, 16)}, {vr(Vf[1][t], 4)}, {vr(P + 4 * t, 4)}, {vr(O, 16)}")
    e("s_lshl_b32 s38, s71, 13")
    e("s_add_u32 s38, s38, s72")
    e("s_add_u32 s38, s38, s73")
    e("s_nop 5")
    e(f"v_mov_b32 v{t1}, {fl(2.0 ** -64)}")
    e("s_nop 5")
    e(f"v_cmp_ngt_f32 vcc, v{O + 8}, v{t1}")
    e(f"s_cbranch_vccnz L_{px}_slow")
    k.label(f"L_{px}_fin")
    e(f"v_rcp_f32 v{t0}, v{O + 8}")
    e("s_nop 0")
    for i in range(8):
        e(f"v_mul_f32 v{O + i}, v{O + i}, v{t0}")
    pack8(k, O, P)
    e(f"buffer_store_dwordx4 {vr(P, 4)}, v{vL16}, s[20:23], s38 offen sc1")
    srd(k, 12, P_WS, WS_FLG, 4096)
    e("s_lshl_b32 s37, s71, 7")
    e("s_lshl_b32 s38, s70, 2")
    e("s_add_u32 s37, s37, s38")
    e("s_add_u32 s37, s37, 2048")
    e(f"v_mov_b32 v{t0}, 0")
    e(f"v_mov_b32 v{t1}, 1")
    e("s_waitcnt vmcnt(0)")
    e("s_barrier")
    e("s_cmp_lg_u32 s34, 0")
    e(f"s_cbranch_scc1 L_{k.name}_fin")
    e("s_mov_b64 exec, 1")
    e(f"buffer_store_dword v{t1}, v{t0}, s[12:15], s37 offen sc1")
    e("s_mov_b64 exec, -1")
    e(f"s_branch L_{k.name}_fin")
    k.label(f"L_{px}_refill")
    dma_chunk()
    e(f"s_branch L_{px}_refilled")
    k.label(f"L_{px}_slow")
    e(f"v_mov_b32 v{t0}, {fl(-3.0e38)}")
    e("s_mov_b32 s79, 0")
    e("s_mov_b32 s74, s72")
    k.label(f"L_{px}_slow_max")
    e(f"buffer_load_dwordx4 {vr(Kf[0], 4)}, v{vL16}, s[4:7], s74 offen")
    e("s_waitcnt vmcnt(0)")
    e(f"v_mfma_f32_32x32x16_bf16 {vr(S[0], 16)}, {vr(Kf[0], 4)}, {vr(Q, 4)}, 0")
    e("s_add_u32 s74, s74, 1024")
    e("s_nop 15")
    for i in range(0, 16, 2):
        e(f"v_max3_f32 v{t0}, v{S[0] + i}, v{S[0] + i + 1}, v{t0}")
    e("s_add_u32 s79, s79, 1")
    e(f"s_cmp_lt_u32 s79, {NT}")
    e(f"s_cbranch_scc1 L_{px}_slow_max")
    e(f"v_mov_b32 v{t1}, v{t0}")
    e("s_nop 1")
    e(f"v_permlane32_swap_b32 v{t0}, v{t1}")
    e("s_nop 1")
    e(f"v_max_f32 v{t0}, v{t0}, v{t1}")
    e(f"v_sub_f32 v{t0}, 0, v{t0}")
    for i in range(16):
        e(f"v_mov_b32 v{C + i}, v{t0}")
        e(f"v_mov_b32 v{O + i}, 0")
    e("s_mov_b32 s79, 0")
    e("s_mov_b32 s74, s72")
    k.label(f"L_{px}_slow_loop")
    e(f"buffer_load_dwordx4 {vr(Kf[0], 4)}, v{vL16}, s[4:7], s74 offen")
    e("s_mov_b64 exec, s[76:77]")
    e(f"buffer_load_dwordx4 {vr(Vf[0][0], 4)}, v{vVl}, s[8:11], s74 offen")
    e(f"buffer_load_dwordx4 {vr(Vf[0][1], 4)}, v{vVl}, s[8:11], s74 offen offset:512")
    e("s_mov_b64 exec, -1")
    e("s_waitcnt vmcnt(0)")
    e(f"v_mfma_f32_32x32x16_bf16 {vr(S[0], 16)}, {vr(Kf[0], 4)}, {vr(Q, 4)}, {vr(C, 16)}")
    e("s_add_u32 s74, s74, 1024")
    e("s_nop 15")
    for i in range(16):
        e(f"v_exp_f32 v{S[0] + i}, v{S[0] + i}")
    e("s_nop 0")
    pack8(k, S[0], P)
    pack8(k, S[0] + 8, P + 4)
    e("s_nop 1")
    for t in range(2):
        e(f"v_mfma_f32_32x32x16_bf16 {vr(O, 16)}, {vr(Vf[0][t], 4)}, {vr(P + 4 * t, 4)}, {vr(O, 16)}")
    e("s_add_u32 s79, s79, 1")
    e(f"s_cmp_lt_u32 s79, {NT}")
    e(f"s_cbranch_scc1 L_{px}_slow_loop")
    e("s_nop 15")
    e(f"s_branch L_{px}_fin")
    return 2 * RING
```

```python
import math, os
PSLEEP = int(os.environ.get('PSLEEP', '3'))
SC = os.environ.get('SC', 'qo')
def sc(c):
    return ' sc1' if (c in SC or c == '!') else ''
from asmlib import *

WS_Q, WS_K, WS_V = 0x000000, 0x200000, 0x400000
WS_H, WS_X1, WS_O = 0x600000, 0x800000, 0xA00000
WS_H3 = 0xC00000
WS_KN = 0x1304000
WS_PST = 0x1310000
WS_PG = 0x1360000
WS_CS3 = 0x1390000
WS_FLG = 0x13A0000
WS_BB = 0x1400000
WS_PART = 0x1800000
PART_BYTES = 32 * 64 * 3072
MB2 = 0x200000
H3_BYTES = 2048 * 1792 * 2

P_X, P_WQKV, P_WO, P_W1, P_W2, P_W3, P_W4, P_GATE, P_OUT, P_DBG, P_WS = 40, 42, 44, 48, 50, 52, 54, 56, 58, 60, 62
LOG2E = 1.4426950408889634
QSCALE = 0.25 * LOG2E
GA1 = -2.0 * math.sqrt(2.0 / math.pi) * LOG2E
GA3 = GA1 * 0.044715

DPP_MAX = ("row_shr:1 row_mask:0xf bank_mask:0xf", "row_shr:2 row_mask:0xf bank_mask:0xf",
           "row_shr:4 row_mask:0xf bank_mask:0xf", "row_shr:8 row_mask:0xf bank_mask:0xf",
           "row_bcast:15 row_mask:0xa bank_mask:0xf", "row_bcast:31 row_mask:0xc bank_mask:0xf")

def srd(k, d, p, off, size):
    if off:
        k.e(f"s_add_u32 s{d}, s{p}, {hx(off)}")
        k.e(f"s_addc_u32 s{d+1}, s{p+1}, 0")
    else:
        k.e(f"s_mov_b32 s{d}, s{p}")
        k.e(f"s_mov_b32 s{d+1}, s{p+1}")
    k.e(f"s_mov_b32 s{d+2}, {hx(size)}")
    k.e(f"s_mov_b32 s{d+3}, 0x20000")

def head(k, nwg, fused=False):
    k.e(f"s_cmp_ge_u32 s2, {nwg}")
    k.e(f"s_cbranch_scc1 L_{k.name}_end")
    k.stamp(0)
    k.e("s_load_dwordx16 s[40:55], s[0:1], 0")
    k.e("s_load_dwordx8 s[56:63], s[0:1], 64")
    k.e("v_and_b32 v1, 63, v0")
    k.e("v_lshrrev_b32 v2, 6, v0")
    k.e("s_nop 0")
    k.e("v_readfirstlane_b32 s34, v2")
    k.e("s_and_b32 s35, s2, 7")
    k.e("s_lshr_b32 s36, s2, 3")
    if fused:
        k.e("s_lshr_b32 s33, s36, 5")
        k.e("s_xor_b32 s33, s33, s36")
        k.e("s_and_b32 s33, s33, 1")
        k.e("s_lshr_b32 s36, s36, 1")

SLOTS = {}
def tail(k):
    k.label(f"L_{k.name}_fin")
    if K.STAMP:
        k.stamp(10, K.MODE)
        k.e("s_waitcnt vmcnt(0)")
        k.stamp(11, K.MODE)
        k.stamp_store(SLOTS.setdefault(k.name, len(SLOTS)))
    k.label(f"L_{k.name}_end")
    k.e("s_endpgm")

def pack8(k, src, dst):
    for i in range(4):
        k.e(f"v_cvt_pk_bf16_f32 v{dst+i}, v{src+2*i}, v{src+2*i+1}")

def interleave(k, chains):
    n = max(len(c) for c in chains)
    for i in range(n):
        for c in chains:
            if i < len(c):
                if c[i] == "NOP":
                    if len(chains) < 2:
                        k.e("s_nop 0")
                    continue
                k.e(c[i])

def ln_gelu_pair(y, cs, nmean, rstd, t, cA1, cA3, one, scalar=False):
    p = lambda r: f"v[{r}:{r+1}]"
    if scalar:
        l = []
        for op in range(9):
            for d in range(2):
                y_, t_, c_ = y + d, t + d, cs + d
                l.append([f"v_fma_f32 v{y_}, v{c_}, v{nmean}, v{y_}", f"v_mul_f32 v{y_}, v{y_}, v{rstd}",
                          f"v_mul_f32 v{t_}, v{y_}, v{y_}", f"v_fma_f32 v{t_}, v{t_}, v{cA3}, v{cA1}",
                          f"v_mul_f32 v{t_}, v{t_}, v{y_}", f"v_exp_f32 v{t_}, v{t_}",
                          f"v_add_f32 v{t_}, v{t_}, v{one}", f"v_rcp_f32 v{t_}, v{t_}",
                          f"v_mul_f32 v{y_}, v{y_}, v{t_}"][op])
        return l
    return [
        f"v_pk_fma_f32 {p(y)}, {p(cs)}, {p(nmean)}, {p(y)} op_sel_hi:[1,0,1]",
        f"v_pk_mul_f32 {p(y)}, {p(y)}, {p(rstd)} op_sel_hi:[1,0]",
        f"v_pk_mul_f32 {p(t)}, {p(y)}, {p(y)}",
        f"v_pk_fma_f32 {p(t)}, {p(t)}, {p(cA3)}, {p(cA1)} op_sel_hi:[1,0,0]",
        f"v_pk_mul_f32 {p(t)}, {p(t)}, {p(y)}",
        f"v_exp_f32 v{t}, v{t}",
        f"v_exp_f32 v{t+1}, v{t+1}",
        "NOP",
        f"v_pk_add_f32 {p(t)}, {p(t)}, {p(one)} op_sel_hi:[1,0]",
        f"v_rcp_f32 v{t}, v{t}",
        f"v_rcp_f32 v{t+1}, v{t+1}",
        "NOP",
        f"v_pk_mul_f32 {p(y)}, {p(y)}, {p(t)}",
    ]

def rstd_from_sums(k, mean, rstd):
    e = k.e
    e(f"v_mul_f32 v{mean}, {fl(-1.0 / 512)}, v{mean}")
    e(f"v_mul_f32 v{rstd}, {fl(1.0 / 512)}, v{rstd}")
    e(f"v_fma_f32 v{rstd}, -v{mean}, v{mean}, v{rstd}")
    e(f"v_max_f32 v{rstd}, 0, v{rstd}")
    e(f"v_add_f32 v{rstd}, {fl(1e-5)}, v{rstd}")
    e(f"v_rsq_f32 v{rstd}, v{rstd}")

def ln_gelu_store(k, g, va, csr, nmean, rstd, vL16, s_mi, s_ni, s_tmp, srdO, scratch=None, cls="h", scalar=False):
    e = k.e
    if scratch is None:
        scratch = va.a(24, 4)
    pk = [scratch, scratch + 4]
    tmp = [scratch + 8 + 2 * j for j in range(4)]
    cA1, cA3, one = scratch + 16, scratch + 18, scratch + 20
    e(f"v_mov_b32 v{cA1}, {fl(GA1)}")
    e(f"v_mov_b32 v{cA3}, {fl(GA3)}")
    e(f"v_mov_b32 v{one}, 1.0")
    cnt = 0
    for mi in range(g.MI):
        for ni in range(g.NI):
            a = g.acc[0][mi][ni]
            for half in range(2):
                chains = [ln_gelu_pair(a + half * 8 + 2 * j, csr[ni] + half * 8 + 2 * j, nmean[mi], rstd[mi], tmp[j], cA1, cA3, one, scalar)
                          for j in range(4)]
                interleave(k, chains)
                p = pk[cnt & 1]
                cnt += 1
                if half == 0:
                    e(f"s_add_u32 s{s_tmp}, s{s_mi[mi]}, s{s_ni[ni]}")
                else:
                    e(f"s_add_u32 s{s_tmp}, s{s_tmp}, 0x10000")
                pack8(k, a + half * 8, p)
                e(f"buffer_store_dwordx4 {vr(p, 4)}, v{vL16}, {sr(srdO, 4)}, s{s_tmp} offen{sc(cls)}")

def prefetch(k, srd_, vlane16, vdst, s_off, nper):
    for i in range(nper):
        if i and i % 4 == 0:
            k.e(f"s_add_u32 s{s_off}, s{s_off}, 4096")
        k.e(f"buffer_load_dwordx4 {vr(vdst, 4)}, v{vlane16}, {sr(srd_, 4)}, s{s_off} offen offset:{(i % 4) * 1024}")

def poll(k, srdF, s_off, vaddr, vf, nlanes, want, cmp="eq", wave=4, sleep=None):
    sleep = sleep or PSLEEP
    e = k.e
    loop, done, skip = k.newlabel("pl"), k.newlabel("pd"), k.newlabel("ps")
    e(f"s_cmp_lg_u32 s34, {wave}")
    e(f"s_cbranch_scc1 {skip}")
    e(f"s_mov_b32 s66, {hx((1 << nlanes) - 1)}")
    e("s_mov_b32 s67, 0")
    e("s_mov_b32 s65, 0")
    e("s_mov_b64 exec, s[66:67]")
    k.label(loop)
    e(f"buffer_load_dword v{vf}, v{vaddr}, {sr(srdF, 4)}, {s_off} offen sc1")
    e("s_waitcnt vmcnt(0)")
    e(f"v_cmp_{cmp}_u32 vcc, {want}, v{vf}")
    e("s_add_u32 s65, s65, 1")
    e("s_cmp_eq_u64 vcc, s[66:67]")
    e(f"s_cbranch_scc1 {done}")
    e(f"s_sleep {sleep}")
    e("s_cmp_lt_u32 s65, 0x100000")
    e(f"s_cbranch_scc1 {loop}")
    k.label(done)
    e("s_mov_b64 exec, -1")
    k.label(skip)

def x1_epilogue(k, a, xr, gr, pk, t, vL16, s_blk, srdX1, srdPST, srdPG, s_tile, s_cb, s_wn, flag=''):
    e = k.e
    t0, t1, t2, ss, sq, sg, sg2 = t
    for r in (ss, sq, sg, sg2):
        e(f"v_mov_b32 v{r}, 0")
    for q in range(4):
        for d in range(2):
            i = 4 * q + 2 * d
            x_, g_ = xr + 2 * q + d, gr + 2 * q + d
            e(f"v_lshlrev_b32 v{t0}, 16, v{x_}")
            e(f"v_and_b32 v{t1}, 0xffff0000, v{x_}")
            e(f"v_lshlrev_b32 v{t2}, 16, v{g_}")
            e(f"v_fmac_f32 v{sg}, v{t0}, v{t2}")
            e(f"v_and_b32 v{t2}, 0xffff0000, v{g_}")
            e(f"v_add_f32 v{a+i}, v{a+i}, v{t0}")
            e(f"v_add_f32 v{a+i+1}, v{a+i+1}, v{t1}")
            e(f"v_fmac_f32 v{sg2}, v{t1}, v{t2}")
            e(f"v_add_f32 v{ss}, v{ss}, v{a+i}")
            e(f"v_fmac_f32 v{sq}, v{a+i}, v{a+i}")
            e(f"v_add_f32 v{ss}, v{ss}, v{a+i+1}")
            e(f"v_fmac_f32 v{sq}, v{a+i+1}, v{a+i+1}")
    for hf in range(2):
        pack8(k, a + hf * 8, pk[hf])
        e(f"buffer_store_dwordx4 {vr(pk[hf], 4)}, v{vL16}, {sr(srdX1, 4)}, s{s_blk + hf} offen{flag}")
    e(f"v_add_f32 v{sg}, v{sg}, v{sg2}")
    e(f"v_lshrrev_b32 v{t1}, 5, v1")
    e(f"v_mov_b32 v{sg2}, v{sg}")
    e(f"v_and_b32 v{t0}, 31, v1")
    e(f"v_lshlrev_b32 v{t2}, 4, v{t0}")
    e(f"v_lshl_add_u32 v{t0}, v{t1}, 2, v{t2}")
    e(f"v_permlane32_swap_b32 v{ss}, v{sq}")
    e(f"v_permlane32_swap_b32 v{sg}, v{sg2}")
    e(f"s_lshl_b32 s64, s{s_tile}, 3")
    e(f"s_add_u32 s64, s64, s{s_cb}")
    e("s_lshl_b32 s64, s64, 9")
    e(f"s_lshl_b32 s65, s{s_wn}, 3")
    e("s_add_u32 s64, s64, s65")
    e(f"s_lshl_b32 s65, s{s_tile}, 2")
    e(f"s_lshr_b32 s66, s{s_cb}, 1")
    e("s_add_u32 s65, s65, s66")
    e("s_lshl_b32 s65, s65, 9")
    e(f"s_and_b32 s66, s{s_cb}, 1")
    e("s_lshl_b32 s66, s66, 1")
    e(f"s_add_u32 s66, s66, s{s_wn}")
    e("s_lshl_b32 s66, s66, 2")
    e("s_add_u32 s65, s65, s66")
    e(f"v_add_f32 v{ss}, v{ss}, v{sq}")
    e(f"v_add_f32 v{sg}, v{sg}, v{sg2}")
    e(f"buffer_store_dword v{ss}, v{t0}, {sr(srdPST, 4)}, s64 offen{flag}")
    e(f"buffer_store_dword v{sg}, v{t2}, {sr(srdPG, 4)}, s65 offen{flag}")
```

```python
import os
from asmlib import *
from common import *
from gemm import *

GK = dict(wave_v=2, lane_v=1, s_row0=32, s_col0=33, s_wave=34, stmp=28, stmp2=76, nloaders=4, lwave_v=3, s_lwave=69)
NPRO = int(os.environ.get('NPRO', '2'))
G1MAP = os.environ.get('G1MAP', 'min')

def colsum_loads(k, ld, t0, t1):
    e = k.e
    srd(k, 20, P_W3, 0, 512 * 1792 * 2)
    e(f"v_bfe_u32 v{t0}, v0, 3, 5")
    e(f"v_mul_u32_u24 v{t0}, 3584, v{t0}")
    e(f"v_and_b32 v{t1}, 7, v0")
    e(f"v_lshl_add_u32 v{t0}, v{t1}, 4, v{t0}")
    e("s_lshl_b32 s83, s82, 7")
    e(f"v_add_u32 v{t0}, s83, v{t0}")

def gen_g1():
    k = K("g1_kernel")
    e = k.e
    head(k, 256)
    e("v_and_b32 v3, 3, v2")
    e("s_and_b32 s69, s34, 3")
    e("s_and_b32 s37, s36, 15")
    if G1MAP == 'min':
        e("s_and_b32 s38, s35, 3")
        e("s_lshl_b32 s38, s38, 2")
        e("s_and_b32 s39, s37, 3")
        e("s_add_u32 s70, s38, s39")
        e("s_lshr_b32 s38, s35, 2")
        e("s_lshl_b32 s38, s38, 2")
        e("s_lshr_b32 s39, s37, 2")
        e("s_add_u32 s71, s38, s39")
        e("s_lshl_b32 s79, s39, 1")
        e("s_and_b32 s39, s37, 1")
        e("s_add_u32 s79, s79, s39")
        e("s_lshr_b32 s39, s36, 4")
        e("s_add_u32 s79, s79, s39")
        e("s_and_b32 s39, s37, 2")
        e("s_lshl_b32 s39, s39, 1")
        e("s_add_u32 s79, s79, s39")
        e("s_and_b32 s79, s79, 7")
    else:
        e("s_mov_b32 s70, s37")
        e("s_mov_b32 s71, s35")
        e("s_and_b32 s79, s37, 7")
        e("s_cmp_lt_u32 s36, 16")
        e("s_cbranch_scc1 L_g1_map")
        e("s_lshl_b32 s70, s35, 1")
        e("s_and_b32 s38, s37, 1")
        e("s_add_u32 s70, s70, s38")
        e("s_lshr_b32 s71, s37, 1")
        e("s_lshl_b32 s38, s38, 2")
        e("s_add_u32 s79, s71, s38")
        e("s_and_b32 s79, s79, 7")
        k.label("L_g1_map")
    e("s_lshl_b32 s32, s70, 7")
    e("s_lshl_b32 s33, s71, 6")
    e("s_lshr_b32 s37, s34, 1")
    e("s_and_b32 s38, s34, 1")
    e("s_waitcnt lgkmcnt(0)")
    k.stamp(1)
    srd(k, 4, P_X, 0, MB2)
    e("s_cmp_ge_u32 s36, 16")
    e("s_cbranch_scc1 L_g1_w1")
    srd(k, 8, P_WQKV, 0, 512 * 1536 * 2)
    srd(k, 12, P_WS, WS_Q, 3 * MB2)
    srd(k, 16, P_WS, WS_KN, 4096)
    va = VAlloc(4)
    g = Gemm(k, va, 128, 192, 2, 2, 4, 1, [Seg(512, 4, 1024, 8, 3072, rot=79)], False, (True, True, False), **GK)
    g.alloc()
    e("s_cmp_lt_u32 s34, 4")
    e("s_cbranch_scc1 L_g1_qkv_c")
    g.setup_dma()
    ld = g.acc[0][0][1]
    assert g.acc[0][1][2] + 16 - ld >= 64
    vcs = va.a()
    t = g.t
    CSL = 0
    e("s_lshl_b32 s82, s35, 4")
    e("s_add_u32 s82, s82, s36")
    e("s_and_b32 s39, s82, 3")
    e("s_lshr_b32 s82, s82, 2")
    e("s_cmp_eq_u32 s39, 0")
    e("s_cselect_b32 s82, s82, 99")
    def side():
        colsum_loads(k, ld, vcs, t[0])
        e("s_cmp_lt_u32 s82, 28")
        e(f"s_cselect_b32 s22, {hx(512 * 1792 * 2)}, 0")
        e("s_mov_b32 s83, 0")
        for j in range(16):
            k.vmem(f"buffer_load_dwordx4 {vr(ld + 4 * j, 4)}, v{vcs}, s[20:23], s83 offen", "side")
            e(f"s_add_u32 s83, s83, {32 * 3584}")
    g.run_loader(side)
    ac = g.acc[0][0][0]
    for i in range(8):
        e(f"v_mov_b32 v{ac + i}, 0")
    for j in range(16):
        e(f"s_waitcnt vmcnt({15 - j})")
        for d in range(4):
            e(f"v_lshlrev_b32 v{t[1]}, 16, v{ld + 4 * j + d}")
            e(f"v_and_b32 v{t[2]}, 0xffff0000, v{ld + 4 * j + d}")
            e(f"v_add_f32 v{ac + 2 * d}, v{ac + 2 * d}, v{t[1]}")
            e(f"v_add_f32 v{ac + 2 * d + 1}, v{ac + 2 * d + 1}, v{t[2]}")
    e(f"v_and_b32 v{t[0]}, 255, v0")
    e(f"v_lshlrev_b32 v{t[0]}, 5, v{t[0]}")
    e(f"ds_write_b128 v{t[0]}, {vr(ac, 4)}")
    e(f"ds_write_b128 v{t[0]}, {vr(ac + 4, 4)} offset:16")
    e(f"v_lshlrev_b32 v{t[3]}, 4, v1")
    e("s_waitcnt lgkmcnt(0)")
    e("s_barrier")
    e("s_cmp_lg_u32 s34, 4")
    e(f"s_cbranch_scc1 L_{k.name}_fin")
    e("s_cmp_lt_u32 s82, 28")
    e("s_cbranch_scc1 L_g1_cs")
    e("s_cmp_lg_u32 s82, 31")
    e(f"s_cbranch_scc1 L_{k.name}_fin")
    srd(k, 12, P_WS, WS_FLG, 4096)
    for i in range(4):
        e(f"v_mov_b32 v{ld + i}, 0")
    for i in range(4):
        e(f"buffer_store_dwordx4 {vr(ld, 4)}, v{t[3]}, s[12:15], 0 offen offset:{i * 1024}")
    e(f"s_branch L_{k.name}_fin")
    k.label("L_g1_cs")
    srd(k, 12, P_WS, WS_CS3, 1792 * 4)
    e(f"v_lshlrev_b32 v{t[0]}, 2, v1")
    for r in range(32):
        e(f"ds_read_b32 v{ld + r}, v{t[0]} offset:{r * 256}")
        if r % 8 == 7:
            e("s_waitcnt lgkmcnt(0)")
    for r in range(1, 32):
        e(f"v_add_f32 v{ld}, v{ld}, v{ld + r}")
    e("s_lshl_b32 s68, s82, 8")
    e(f"buffer_store_dword v{ld}, v{t[0]}, s[12:15], s68 offen")
    e(f"s_branch L_{k.name}_fin")
    k.label("L_g1_qkv_c")
    k.vm = []
    g.setup_reads()
    g.stamp_ids = (2, 3)
    g.stage_stamps = 2
    vS, vV, tt = va.a(), va.a(), va.a()
    pk = [va.a(4, 4), va.a(4, 4)]
    nr = va.a(4, 4)
    e("s_lshl_b32 s74, s71, 18")
    e("s_lshl_b32 s39, s38, 17")
    e("s_add_u32 s74, s74, s39")
    e("s_lshl_b32 s39, s70, 12")
    e("s_add_u32 s74, s74, s39")
    e("s_lshl_b32 s39, s37, 11")
    e("s_add_u32 s74, s74, s39")
    e(f"v_lshlrev_b32 v{vS}, 4, v1")
    e(f"v_bfe_u32 v{vV}, v1, 4, 1")
    e(f"v_lshlrev_b32 v{vV}, 16, v{vV}")
    e(f"v_lshrrev_b32 v{tt}, 5, v1")
    e(f"v_lshl_add_u32 v{vV}, v{tt}, 8, v{vV}")
    e(f"v_and_b32 v{tt}, 15, v1")
    e(f"v_lshl_add_u32 v{vV}, v{tt}, 4, v{vV}")
    g.run_compute()
    lds = g.lds_bytes
    e(f"s_add_u32 s75, s74, {hx(2 * MB2)}")
    e("s_nop 7")
    e("s_nop 3")
    cnt = 0
    for mi in range(2):
        for tq in range(2):
            a = g.acc[0][mi][2] + tq * 8
            p = pk[cnt & 1]; cnt += 1
            pack8(k, a, p)
            e(f"buffer_store_dwordx4 {vr(p, 4)}, v{vV}, s[12:15], s75 offen offset:{mi * 1024 + tq * 512}{sc('q')}")
    for hf in range(2):
        e(f"s_add_u32 s75, s74, {hx(MB2 + (hf << 16))}")
        for mi in range(2):
            a = g.acc[0][mi][1] + hf * 8
            p = pk[cnt & 1]; cnt += 1
            pack8(k, a, p)
            e(f"buffer_store_dwordx4 {vr(p, 4)}, v{vS}, s[12:15], s75 offen offset:{mi * 1024}{sc('q')}")
            n = nr + mi * 2 + hf
            e(f"v_mul_f32 v{n}, v{a}, v{a}")
            for i in range(1, 8):
                e(f"v_fmac_f32 v{n}, v{a+i}, v{a+i}")
    for hf in range(2):
        e(f"s_add_u32 s75, s74, {hx(hf << 16)}")
        for mi in range(2):
            a = g.acc[0][mi][0] + hf * 8
            for i in range(8):
                e(f"v_mul_f32 v{a+i}, {fl(QSCALE)}, v{a+i}")
            p = pk[cnt & 1]; cnt += 1
            pack8(k, a, p)
            e(f"buffer_store_dwordx4 {vr(p, 4)}, v{vS}, s[12:15], s75 offen offset:{mi * 1024}{sc('q')}")
    for hh in range(2):
        e(f"v_permlane32_swap_b32 v{nr+hh}, v{nr+2+hh}")
    e("s_nop 1")
    for hh in range(2):
        e(f"v_add_f32 v{nr+hh}, v{nr+hh}, v{nr+2+hh}")
    for dpp in DPP_MAX:
        e("s_nop 1")
        for hh in range(2):
            e(f"v_max_f32_dpp v{nr+hh}, v{nr+hh}, v{nr+hh} {dpp}")
    e("s_lshl_b32 s75, s70, 1")
    e("s_add_u32 s75, s75, s37")
    e("s_lshl_b32 s75, s75, 7")
    e("s_lshl_b32 s39, s71, 4")
    e("s_add_u32 s75, s75, s39")
    e("s_lshl_b32 s39, s38, 3")
    e("s_add_u32 s75, s75, s39")
    e(f"v_mov_b32 v{vS}, 0")
    e("s_mov_b32 s66, 0")
    e("s_mov_b32 s67, 0x80000000")
    e("s_mov_b64 exec, s[66:67]")
    e(f"buffer_store_dwordx2 {vr(nr, 2)}, v{vS}, s[16:19], s75 offen")
    e("s_mov_b64 exec, -1")
    e("s_barrier")
    e(f"s_branch L_{k.name}_end" if not K.STAMP else f"s_branch L_{k.name}_fin")
    maxv = va.n
    k.label("L_g1_w1")
    k.vm = []
    srd(k, 8, P_W1, 0, 512 * 512 * 2)
    srd(k, 12, P_WS, WS_H, MB2)
    va = VAlloc(4)
    g = Gemm(k, va, 128, 64, 2, 2, 4, 1, [Seg(512, 4, 1024, 8, 1024, rot=79)], False, True, xorroles=True, **GK)
    g.alloc()
    STAT = g.lds_bytes
    s1, s2, cs, dm, ones = [va.a() for _ in range(5)]
    t = g.t
    e("s_cmp_lt_u32 s34, 4")
    e("s_cbranch_scc1 L_g1_w1_c")
    g.setup_dma()
    g.run_loader()
    srd(k, 4, P_W2, 0, 512 * 512 * 2)
    e("s_and_b32 s64, s36, 15")
    e("s_lshl_b32 s64, s64, 2")
    e("s_add_u32 s64, s64, s69")
    e("s_lshl_b32 s64, s64, 13")
    e(f"v_lshlrev_b32 v{t[3]}, 4, v1")
    prefetch(k, 4, t[3], g.acc[0][0][0], 64, 8)
    e("s_barrier")
    e(f"s_branch L_{k.name}_fin")
    k.label("L_g1_w1_c")
    k.vm = []
    g.setup_reads()
    g.stamp_ids = (2, 3)
    g.stage_stamps = 2
    for r in (s1, s2, cs):
        e(f"v_mov_b32 v{r}, 0")
    e(f"v_mov_b32 v{ones}, 0x3f803f80")
    def extra(st, step, buf, gs):
        l = []
        x = g.X[buf][0]
        w = g.W[buf][0]
        for i in range(4):
            l.append(f"v_dot2c_f32_bf16 v{s2}, v{x+i}, v{x+i}")
            l.append(f"v_dot2c_f32_bf16 v{s1}, v{x+i}, v{ones}")
            l.append(f"v_dot2c_f32_bf16 v{cs}, v{w+i}, v{ones}")
        return l
    g.run_compute(extra)
    e("s_nop 3")
    e(f"v_mov_b32 v{dm}, v{cs}")
    e(f"v_and_b32 v{t[0]}, 31, v1")
    e(f"v_lshrrev_b32 v{t[1]}, 5, v1")
    e(f"v_permlane32_swap_b32 v{s1}, v{s2}")
    e(f"v_permlane32_swap_b32 v{dm}, v{cs}")
    e("s_lshl_b32 s39, s37, 8")
    e("s_lshl_b32 s64, s38, 7")
    e(f"v_add_f32 v{s1}, v{s1}, v{s2}")
    e(f"v_add_f32 v{cs}, v{dm}, v{cs}")
    e("s_add_u32 s39, s39, s64")
    e(f"s_add_u32 s39, s39, {STAT}")
    e(f"s_add_u32 s64, s64, {STAT + 1024}")
    e(f"v_lshlrev_b32 v{t[2]}, 2, v{t[0]}")
    e(f"v_lshl_add_u32 v{t[3]}, v{t[1]}, 9, v{t[2]}")
    e(f"v_add_u32 v{t[3]}, s39, v{t[3]}")
    e(f"ds_write_b32 v{t[3]}, v{s1}")
    e(f"v_add_u32 v{t[4]}, s64, v{t[2]}")
    e(f"ds_write_b32 v{t[4]}, v{cs}")
    e("s_waitcnt lgkmcnt(0)")
    e("s_barrier")
    csr = [va.a(16, 4)]
    mean = [va.a(2, 2), va.a(2, 2)]
    rstd = [va.a(2, 2), va.a(2, 2)]
    vO = va.a()
    for mi in range(2):
        e(f"s_xor_b32 s65, s38, {mi}")
        e("s_lshl_b32 s65, s65, 5")
        e("s_lshl_b32 s66, s37, 6")
        e("s_add_u32 s65, s65, s66")
        e("s_lshl_b32 s66, s65, 2")
        e(f"s_add_u32 s66, s66, {STAT}")
        e(f"v_add_u32 v{t[3]}, s66, v{t[2]}")
        e(f"ds_read_b32 v{mean[mi]}, v{t[3]}")
        e(f"ds_read_b32 v{rstd[mi]}, v{t[3]} offset:512")
        e("s_add_u32 s65, s65, s32")
        e(f"s_lshl_b32 s{80 + mi}, s65, 5")
    e(f"v_lshlrev_b32 v{t[3]}, 4, v{t[1]}")
    e(f"v_add_u32 v{t[3]}, s64, v{t[3]}")
    for q in range(4):
        e(f"ds_read_b128 {vr(csr[0] + 4 * q, 4)}, v{t[3]} offset:{q * 32}")
    e("s_lshl_b32 s68, s38, 5")
    e("s_add_u32 s68, s68, s33")
    e("s_lshl_b32 s68, s68, 12")
    e(f"v_lshlrev_b32 v{vO}, 4, v1")
    e("s_waitcnt lgkmcnt(0)")
    for mi in range(2):
        rstd_from_sums(k, mean[mi], rstd[mi])
    ln_gelu_store(k, g, va, csr, mean, rstd, vO, (80, 81), (68,), 64, 12)
    maxv = max(maxv, va.n)
    lds = max(lds, STAT + 2048)
    tail(k)
    return k, maxv, lds
```

```python
from asmlib import *
import os
DBG = os.environ.get('GDBG', '')

class VAlloc:
    def __init__(self, start=0):
        self.n = start
    def a(self, cnt=1, align=1):
        self.n = (self.n + align - 1) // align * align
        b = self.n
        self.n += cnt
        return b

class Seg:
    def __init__(self, K, srdA, lda, srdB, ldb, a0=0, b0=0, shift=0, acc=0, rot=None, dynshift=False):
        self.K, self.srdA, self.lda, self.srdB, self.ldb = K, srdA, lda, srdB, ldb
        self.aflag = ""
        self.rot, self.dynshift = rot, dynshift
        self.a0, self.b0, self.shift, self.acc = a0, b0, shift, acc
        self.Akey = (srdA, lda, shift)
        self.Bkey = (srdB, ldb)

class Gemm:
    def __init__(self, k, va, TM, TN, WM, WN, NS, SUB, segs, perm, swapped, BK=64, lds_base=0,
                 xorroles=False, wave_v=None, lane_v=None, s_row0=None, s_col0=None, s_wave=None, stmp=None, stmp2=None,
                 nloaders=None, lwave_v=None, s_lwave=None, afrag=False, bcol=None, NBUF=2):
        self.NBUF = NBUF
        self.st2 = stmp2
        self.stamp_ids = None
        self.gate_stages = ()
        grp = bool(nloaders)
        self.GA = 4 if (grp and not any(x.dynshift for x in segs)) else 1
        self.GB = 4 if grp else 1
        self.stage_stamps = 0
        self.lpro = int(os.environ.get('LPRO', '2'))
        self.dma_prio = None
        self.afrag = afrag
        self.nloaders, self.lwave_v, self.s_lwave = nloaders, lwave_v, s_lwave
        self.k, self.va = k, va
        self.TM, self.TN, self.WM, self.WN, self.NS, self.SUB, self.BK = TM, TN, WM, WN, NS, SUB, BK
        self.NW = WM * WN
        self.MI = TM // WM // 32
        self.NI = TN // WN // 32
        self.segs, self.perm, self.swapped = segs, perm, swapped
        self.lds_base = lds_base
        self.xor = xorroles
        self.xorB = xorroles and (TN // WN // 32 == 2)
        self.bcol = bcol
        self.wave_v, self.lane_v = wave_v, lane_v
        self.s_row0, self.s_col0, self.s_wave, self.st = s_row0, s_col0, s_wave, stmp
        self.rowA = BK * 2
        self.rowB = TN * 2
        self.KS = BK // 16
        self.Ab = TM * self.rowA
        self.Bb = BK * self.rowB
        self.subsz = self.Ab + self.Bb
        self.slot = self.subsz * SUB
        self.RPA = 1024 // self.rowA
        self.CPA = self.rowA // 16
        nl = nloaders or self.NW
        self.nA = self.Ab // 1024 // nl
        self.nB = self.Bb // 1024 // nl
        assert self.nA >= 1 and self.nB >= 1
        self.RPI = 1024 // self.rowB if 1024 % self.rowB == 0 else None
        self.CPR = self.rowB // 16
        subs = []
        for si, s in enumerate(segs):
            assert s.K % BK == 0
            for ko in range(0, s.K, BK):
                subs.append((si, ko))
        assert len(subs) % SUB == 0
        self.stages = [subs[i:i + SUB] for i in range(0, len(subs), SUB)]
        self.nacc = max(s.acc for s in segs) + 1
        self.lds_bytes = self.slot * NS
        assert lds_base == 0
        self.spw = max(1, 65536 // self.slot)
        self.wsz = self.spw * self.slot
        self.nwin = (NS + self.spw - 1) // self.spw
        self.win0 = 0

    def alloc(self):
        va = self.va
        self.acc = [[[va.a(16, 4) for _ in range(self.NI)] for _ in range(self.MI)] for _ in range(self.nacc)]
        self.X = [[va.a(4, 4) for _ in range(self.MI)] for _ in range(self.NBUF)]
        self.W = [[va.a(4, 4) for _ in range(self.NI)] for _ in range(self.NBUF)]
        self.vA = {}
        self.vB = {}
        for s in self.segs:
            if s.Akey not in self.vA:
                self.vA[s.Akey] = (s, [va.a() for _ in range(self.nA)])
            if s.Bkey not in self.vB:
                self.vB[s.Bkey] = (s, [va.a() for _ in range(self.nB)])
        nmi = self.MI if self.xor else 1
        if self.afrag:
            assert not self.xor
            self.aA = {}
            for w in range(self.win0, self.nwin):
                r = va.a()
                for ks in range(self.KS):
                    self.aA[(w, ks, 0)] = r
        else:
            self.aA = {(w, ks, mi): va.a() for w in range(self.win0, self.nwin) for ks in range(self.KS) for mi in range(nmi)}
        self.aB = {(w, ni): va.a() for w in range(self.win0, self.nwin) for ni in range(self.NI)}
        self.t = [va.a() for _ in range(6)]
        self.s_wA = self.st + 0
        self.s_wB = self.st + 1
        self.s_oA = self.st + 2
        self.s_oB = self.st + 3
        self.s_tA = self.st2 + 0
        self.s_tB = self.st2 + 1
        self.s_t2 = self.st2 + 2
        self.vAc = [va.a() for _ in range(self.nA)] if any(s.dynshift for s in self.segs) else None
        self.vAk = [va.a() for _ in range(self.nA)] if any(s.dynshift for s in self.segs) else None

    def setup_dma(self):
        self.setup_dma0()
        for grp, tab in ((self.GA, self.vA), (self.GB, self.vB)):
            for key, (s, regs) in tab.items():
                for j, r in enumerate(regs):
                    if j % grp:
                        self.k.e(f"v_subrev_u32 v{r}, {(j % grp) * 1024}, v{r}")

    def setup_dma0(self):
        k, t = self.k, self.t
        L, Wv = self.lane_v, (self.lwave_v if self.nloaders else self.wave_v)
        sw = self.s_lwave if self.nloaders else self.s_wave
        e = k.e
        e(f"s_mul_i32 s{self.s_wA}, s{sw}, {self.nA * 1024}")
        e(f"s_mul_i32 s{self.s_wB}, s{sw}, {self.nB * 1024}")
        e(f"s_add_u32 s{self.s_wB}, s{self.s_wB}, {self.Ab}")
        if self.afrag:
            RT = self.TM // 32
            assert RT % self.nA == 0 or self.nA % RT == 0
            for key, (s, regs) in self.vA.items():
                for j, r in enumerate(regs):
                    e(f"v_mul_u32_u24 v{t[0]}, {self.nA}, v{Wv}")
                    if j:
                        e(f"v_add_u32 v{t[0]}, {j}, v{t[0]}")
                    e(f"v_and_b32 v{t[1]}, {RT - 1}, v{t[0]}")
                    e(f"v_lshrrev_b32 v{t[0]}, {RT.bit_length() - 1}, v{t[0]}")
                    if s.dynshift:
                        e(f"v_and_b32 v{t[2]}, 31, v{L}")
                        e(f"v_lshl_add_u32 v{t[2]}, v{t[1]}, 5, v{t[2]}")
                        e(f"v_add_u32 v{r}, s{self.s_row0}, v{t[2]}")
                        e(f"v_lshrrev_b32 v{t[2]}, 5, v{L}")
                        e(f"v_lshlrev_b32 v{t[2]}, 9, v{t[2]}")
                        e(f"v_lshl_add_u32 v{self.vAk[j]}, v{t[0]}, 16, v{t[2]}")
                    else:
                        e(f"v_lshlrev_b32 v{r}, 4, v{L}")
                        e(f"v_lshl_add_u32 v{r}, v{t[1]}, 10, v{r}")
                        e(f"v_lshl_add_u32 v{r}, v{t[0]}, 16, v{r}")
                        e(f"s_lshl_b32 s{self.s_oA}, s{self.s_row0}, 5")
                        e(f"v_add_u32 v{r}, s{self.s_oA}, v{r}")
        else:
            sh = {8: 3, 4: 2}[self.CPA]
            e(f"v_lshrrev_b32 v{t[0]}, {sh}, v{L}")
            e(f"v_mul_u32_u24 v{t[1]}, {self.nA * self.RPA}, v{Wv}")
            e(f"v_add3_u32 v{t[0]}, v{t[0]}, v{t[1]}, s{self.s_row0}")
            e(f"v_lshrrev_b32 v{t[1]}, 4, v{L}")
            e(f"v_and_b32 v{t[2]}, {self.CPA - 1}, v{L}")
            e(f"v_xor_b32 v{t[3]}, v{t[2]}, v{t[1]}")
            if self.BK == 64:
                e(f"v_xor_b32 v{t[4]}, 4, v{t[3]}")
            else:
                e(f"v_mov_b32 v{t[4]}, v{t[3]}")
            e(f"v_lshlrev_b32 v{t[3]}, 4, v{t[3]}")
            e(f"v_lshlrev_b32 v{t[4]}, 4, v{t[4]}")
            for key, (s, regs) in self.vA.items():
                e(f"s_mov_b32 s{self.s_oA}, {s.lda}")
                e(f"v_mul_lo_u32 v{t[5]}, v{t[0]}, s{self.s_oA}")
                for j, r in enumerate(regs):
                    c = (self.RPA * j + s.shift) * s.lda
                    e(f"v_add_u32 v{r}, v{t[5]}, v{t[3 + (j & 1)]}")
                    if c:
                        e(f"v_add_u32 v{r}, {hx(c)}, v{r}")
        if self.CPR == 24:
            (s, regs), = self.vB.values()
            e(f"s_mov_b32 s{self.s_oB}, {hx((1 << 32) // 24 + 1)}")
            e(f"s_mov_b32 s{self.s_oA}, {s.ldb}")
            e(f"s_lshl_b32 s{self.s_tA}, s{self.s_col0}, 1")
            for j, r in enumerate(regs):
                e(f"v_mul_u32_u24 v{t[0]}, {self.nB * 64}, v{Wv}")
                e(f"v_add3_u32 v{t[0]}, v{t[0]}, v{L}, {j * 64}" if j * 64 <= 64 else f"v_add_u32 v{t[0]}, {j * 64}, v{t[0]}")
                if j * 64 > 64:
                    e(f"v_add_u32 v{t[0]}, v{t[0]}, v{L}")
                e(f"v_mul_hi_u32 v{t[1]}, v{t[0]}, s{self.s_oB}")
                e(f"v_mul_u32_u24 v{t[2]}, 24, v{t[1]}")
                e(f"v_sub_u32 v{t[2]}, v{t[0]}, v{t[2]}")
                e(f"v_bfe_u32 v{t[3]}, v{t[1]}, 1, 1")
                e(f"v_lshlrev_b32 v{t[3]}, 2, v{t[3]}")
                e(f"v_xor_b32 v{t[2]}, v{t[2]}, v{t[3]}")
                e(f"v_lshrrev_b32 v{t[3]}, 3, v{t[2]}")
                e(f"v_and_b32 v{t[2]}, 7, v{t[2]}")
                e(f"v_lshlrev_b32 v{t[4]}, 10, v{t[3]}")
                e(f"v_lshl_add_u32 v{t[4]}, v{t[2]}, 4, v{t[4]}")
                e(f"v_mul_lo_u32 v{r}, v{t[1]}, s{self.s_oA}")
                e(f"v_add3_u32 v{r}, v{r}, v{t[4]}, s{self.s_tA}")
            return
        sh = {16: 4, 8: 3}[self.CPR]
        e(f"v_lshrrev_b32 v{t[0]}, {sh}, v{L}")
        e(f"v_mul_u32_u24 v{t[1]}, {self.nB * self.RPI}, v{Wv}")
        e(f"v_add_u32 v{t[0]}, v{t[0]}, v{t[1]}")
        e(f"v_and_b32 v{t[2]}, {self.CPR - 1}, v{L}")
        e(f"v_lshrrev_b32 v{t[1]}, 4, v{L}")
        if self.CPR == 8:
            e(f"v_and_b32 v{t[1]}, 1, v{t[1]}")
        e(f"v_lshlrev_b32 v{t[1]}, 2, v{t[1]}")
        e(f"v_xor_b32 v{t[2]}, v{t[2]}, v{t[1]}")
        e(f"v_lshlrev_b32 v{t[2]}, 4, v{t[2]}")
        e(f"s_lshl_b32 s{self.s_oA}, s{self.s_col0}, 1")
        e(f"v_add_u32 v{t[2]}, s{self.s_oA}, v{t[2]}")
        for key, (s, regs) in self.vB.items():
            e(f"s_mov_b32 s{self.s_oA}, {s.ldb}")
            e(f"v_mul_lo_u32 v{t[5]}, v{t[0]}, s{self.s_oA}")
            for j, r in enumerate(regs):
                e(f"v_add_u32 v{r}, v{t[5]}, v{t[2]}")
                c = j * self.RPI * s.ldb
                if c:
                    e(f"v_add_u32 v{r}, {hx(c)}, v{r}")

    def setup_reads(self):
        k, t = self.k, self.t
        L, Wv = self.lane_v, self.wave_v
        e = k.e
        lg = {1: 0, 2: 1, 4: 2}[self.WN]
        lgA = {128: 7, 64: 6}[self.rowA]
        e(f"v_lshrrev_b32 v{t[0]}, {lg}, v{Wv}")
        e(f"v_and_b32 v{t[1]}, {self.WN - 1}, v{Wv}")
        e(f"v_and_b32 v{t[2]}, 31, v{L}")
        e(f"v_lshrrev_b32 v{t[3]}, 5, v{L}")
        if self.afrag:
            r = self.aA[(self.win0, 0, 0)]
            e(f"v_mul_u32_u24 v{t[4]}, {self.MI * 1024}, v{t[0]}")
            e(f"v_lshl_add_u32 v{r}, v{L}, 4, v{t[4]}")
            if self.win0:
                e(f"v_add_u32 v{r}, {hx(self.win0 * 65536)}, v{r}")
            for w in range(self.win0 + 1, self.nwin):
                e(f"v_add_u32 v{self.aA[(w, 0, 0)]}, {hx(w * self.wsz)}, v{r}")
        else:
            e(f"v_mul_u32_u24 v{t[4]}, {self.TM // self.WM * self.rowA}, v{t[0]}")
            e(f"v_lshl_add_u32 v{t[4]}, v{t[2]}, {lgA}, v{t[4]}")
            if self.BK == 64:
                e(f"v_bfe_u32 v{t[5]}, v{L}, 1, 3")
            else:
                e(f"v_bfe_u32 v{t[5]}, v{L}, 2, 2")
            e(f"v_xor_b32 v{t[5]}, v{t[5]}, v{t[3]}")
            nmi = self.MI if self.xor else 1
            for ks in range(self.KS):
                for mi in range(nmi):
                    r = self.aA[(self.win0, ks, mi)]
                    e(f"v_xor_b32 v{r}, {2 * ks}, v{t[5]}")
                    e(f"v_lshl_add_u32 v{r}, v{r}, 4, v{t[4]}")
                    if self.xor:
                        e(f"v_xor_b32 v{t[2]}, {mi}, v{t[1]}")
                        e(f"v_lshl_add_u32 v{r}, v{t[2]}, {lgA + 5}, v{r}")
                    if self.win0:
                        e(f"v_add_u32 v{r}, {hx(self.win0 * 65536)}, v{r}")
                    for w in range(self.win0 + 1, self.nwin):
                        e(f"v_add_u32 v{self.aA[(w, ks, mi)]}, {hx(w * self.wsz)}, v{r}")
        e(f"v_bfe_u32 v{t[2]}, v{L}, 2, 2")
        e(f"v_lshl_add_u32 v{t[4]}, v{t[3]}, {2 if self.perm else 3}, v{t[2]}")
        e(f"v_mul_u32_u24 v{t[4]}, {self.rowB}, v{t[4]}")
        e(f"v_and_b32 v{t[5]}, 1, v{L}")
        e(f"v_lshl_add_u32 v{t[4]}, v{t[5]}, 3, v{t[4]}")
        if self.CPR != 16:
            e(f"v_lshrrev_b32 v{t[2]}, 1, v{t[2]}")
        e(f"v_lshlrev_b32 v{t[2]}, 2, v{t[2]}")
        e(f"v_bfe_u32 v{t[5]}, v{L}, 4, 1")
        e(f"v_lshlrev_b32 v{t[5]}, 1, v{t[5]}")
        e(f"v_bfe_u32 v{t[3]}, v{L}, 1, 1")
        e(f"v_add_u32 v{t[5]}, v{t[5]}, v{t[3]}")
        e(f"v_mul_u32_u24 v{t[3]}, {4 if self.CPR == 24 else self.TN // self.WN // 8}, v{t[1]}")
        e(f"v_add_u32 v{t[5]}, v{t[5]}, v{t[3]}")
        for ni in range(self.NI):
            r = self.aB[(self.win0, ni)]
            if self.xorB:
                e(f"v_xor_b32 v{t[3]}, {ni}, v{t[0]}")
                e(f"v_lshl_add_u32 v{r}, v{t[3]}, 2, v{t[5]}")
            else:
                e(f"v_add_u32 v{r}, {(8 if self.CPR == 24 else 4) * ni}, v{t[5]}")
            e(f"v_xor_b32 v{r}, v{r}, v{t[2]}")
            e(f"v_lshl_add_u32 v{r}, v{r}, 4, v{t[4]}")
            if self.win0:
                e(f"v_add_u32 v{r}, {hx(self.win0 * 65536)}, v{r}")
            for w in range(self.win0 + 1, self.nwin):
                e(f"v_add_u32 v{self.aB[(w, ni)]}, {hx(w * self.wsz)}, v{r}")

    def dma_parts(self, st):
        opsA, opsB = [], []
        base = self.lds_base + (st % self.NS) * self.slot
        si0, ko0 = self.stages[st][0]
        s = self.segs[si0]
        assert all(x[0] == si0 for x in self.stages[st])
        kb = 4096 if self.afrag else 2
        def adv(reg, d, start, length):
            if ko0 == 0:
                if s.rot is None:
                    return [f"s_mov_b32 s{reg}, {hx(start)}"]
                l = [f"s_mul_i32 s{reg}, s{s.rot}, {hx(d)}"]
                if start:
                    l.append(f"s_add_u32 s{reg}, s{reg}, {hx(start)}")
                return l
            l = [f"s_add_u32 s{reg}, s{reg}, {hx(d)}"]
            if s.rot is not None:
                l += [f"s_cmp_eq_u32 s{reg}, {hx(start + length)}", f"s_cselect_b32 s{reg}, {hx(start)}, s{reg}"]
            return l
        initA = adv(self.s_oA, self.SUB * self.BK * kb, s.a0, s.K * kb)
        initB = adv(self.s_oB, self.SUB * self.BK * s.ldb, s.b0 * s.ldb, s.K * s.ldb)
        if s.dynshift:
            assert self.SUB == 1 and self.afrag
            t = self.t
            initA += [f"s_lshr_b32 s{self.s_t2}, s{self.s_oA}, 20",
                      f"s_add_u32 s{self.s_t2}, s{self.s_t2}, 1",
                      f"s_sub_u32 s{self.s_tA}, 0, s{self.s_t2}",
                      f"s_bitcmp1_b32 s{self.s_oA}, 19",
                      f"s_cselect_b32 s{self.s_t2}, s{self.s_t2}, s{self.s_tA}",
                      f"s_movk_i32 s{self.s_tA}, 2048"]
            for j, r in enumerate(self.vA[s.Akey][1]):
                c = self.vAc[j]
                initA += [f"v_add_u32 v{t[0]}, s{self.s_t2}, v{r}",
                          f"v_lshrrev_b32 v{t[1]}, 5, v{t[0]}",
                          f"v_and_b32 v{c}, 31, v{t[0]}",
                          f"v_cmp_gt_u32 vcc, s{self.s_tA}, v{t[0]}",
                          f"v_lshl_add_u32 v{c}, v{c}, 4, v{self.vAk[j]}",
                          f"v_lshl_add_u32 v{c}, v{t[1]}, 10, v{c}",
                          f"v_bfrev_b32 v{t[1]}, 1",
                          f"v_cndmask_b32 v{c}, v{t[1]}, v{c}, vcc"]
        for u in range(self.SUB):
            sb = base + u * self.subsz
            for j, r in enumerate(self.vAc if s.dynshift else self.vA[s.Akey][1]):
                pre, initA = initA, []
                if j == 0 and u:
                    pre = pre + [f"s_add_u32 s{self.s_tA}, s{self.s_oA}, {hx(u * self.BK * kb)}"]
                if j % self.GA == 0:
                    pre = pre + [f"s_add_u32 m0, s{self.s_wA}, {hx(sb + j * 1024)}", "s_nop 0"]
                opsA.append((pre, f"buffer_load_dwordx4 v{r}, {sr(s.srdA, 4)}, s{self.s_tA if u else self.s_oA} offen offset:{(j % self.GA) * 1024}{s.aflag} lds", st))
            for j, r in enumerate(self.vB[s.Bkey][1]):
                pre, initB = initB, []
                if j == 0 and u:
                    pre = pre + [f"s_add_u32 s{self.s_tB}, s{self.s_oB}, {hx(u * self.BK * s.ldb)}"]
                if j % self.GB == 0:
                    pre = pre + [f"s_add_u32 m0, s{self.s_wB}, {hx(sb + j * 1024)}", "s_nop 0"]
                opsB.append((pre, f"buffer_load_dwordx4 v{r}, {sr(s.srdB, 4)}, s{self.s_tB if u else self.s_oB} offen offset:{(j % self.GB) * 1024} lds", st))
        return opsA, opsB

    def dma_ops(self, st):
        a, b = self.dma_parts(st)
        return a + b

    def emit_op(self, o):
        for p in o[0]:
            self.k.e(p if not (p == "s_nop 0" and self.dma_prio) else f"s_setprio {self.dma_prio[0]}")
        self.k.vmem(o[1] if not ('d' in DBG and self.afrag) else "s_nop 0", ("dma", id(self), o[2]))
        if self.dma_prio:
            self.k.e(f"s_setprio {self.dma_prio[1]}")

    def read_list(self, st, step, buf):
        u, ks = divmod(step, self.KS)
        sb = self.lds_base + (st % self.NS) * self.slot + u * self.subsz
        w = (st % self.NS) // self.spw
        la, lb = [], []
        for mi in range(self.MI):
            off = sb + (0 if self.xor else mi * 32 * self.rowA)
            if self.afrag:
                off = sb + (ks * (self.TM // 32) + mi) * 1024
            r = self.aA[(w, ks, mi if self.xor else 0)]
            la.append(f"ds_read_b128 {vr(self.X[buf][mi], 4)}, v{r} offset:{off - w * self.wsz}")
        for ni in range(self.NI):
            for r2 in range(2):
                off = sb + self.Ab + ks * 16 * self.rowB + r2 * (8 if self.perm else 4) * self.rowB
                r = self.aB[(w, ni)]
                lb.append(f"ds_read_b64_tr_b16 {vr(self.W[buf][ni] + 2 * r2, 2)}, v{r} offset:{off - w * self.wsz}")
        if 'r' in DBG and self.afrag:
            return []
        return la[:1] + lb + la[1:]

    def core(self, own_dma, extra=None):
        k = self.k
        nst = len(self.stages)
        spS = self.KS * self.SUB
        nm = self.MI * self.NI
        NB = self.NBUF
        LA = NB - 1
        assert LA <= spS
        total = nst * spS
        nrd = self.MI + 2 * self.NI
        seen = set()
        pend, rate, credit = [], 0.0, 0.0
        if own_dma:
            k.stamp(4, "pro")
            k.wait_vm(("dma", id(self), 0))
            for st in range(self.npro, min(self.NS, nst)):
                pend += self.dma_ops(st)
            rate = len(pend) / float(nm * max(spS - LA, 1))
        if 0 in self.gate_stages:
            k.e("s_barrier")
        k.e("s_barrier")
        k.stamp(2)
        k.stamp(5, "pro")
        if self.stamp_ids:
            k.stamp(self.stamp_ids[0], "mid")
        for g in range(LA):
            for r in self.read_list(0, g, g % NB):
                k.e(r)
        for g in range(total):
            st, step = divmod(g, spS)
            tg = g + LA
            rl = []
            if tg < total:
                tst, tstep = divmod(tg, spS)
                if tstep == 0:
                    w = ""
                    if own_dma:
                        for o in pend:
                            self.emit_op(o)
                        pend = []
                        w = f"vmcnt({k.vm_count_after(('dma', id(self), tst))}) "
                    k.e(f"s_waitcnt {w}lgkmcnt(0)")
                    if self.stage_stamps:
                        k.stamp(1 + tst, "stg")
                    if tst in self.gate_stages:
                        k.e("s_barrier")
                    k.e("s_barrier")
                    if own_dma and tst - 1 + self.NS < nst:
                        pend = self.dma_ops(tst - 1 + self.NS)
                        rate = len(pend) / float(nm * spS)
                        credit = 0.5
                else:
                    k.e(f"s_waitcnt lgkmcnt({min((LA - 1) * nrd, 15)})")
                rl = self.read_list(tst, tstep, tg % NB)
            else:
                k.e(f"s_waitcnt lgkmcnt({max(total - 1 - g, 0) * nrd})")
            si, ko = self.stages[st][step // self.KS]
            accid = self.segs[si].acc
            first = accid not in seen
            seen.add(accid)
            per = max(2, -(-len(rl) // max(nm - 2, 1))) if nm > 1 else len(rl)
            for mi in range(self.MI):
                for ni in range(self.NI):
                    if not ('m' in DBG and self.afrag and g > 1):
                        k.e(self.mfma(st, step, g % NB, mi, ni, first))
                    for _ in range(per):
                        if rl:
                            k.e(rl.pop(0))
                    credit += rate
                    while pend and credit >= 1.0:
                        self.emit_op(pend.pop(0))
                        credit -= 1.0
            assert not rl
            if extra:
                for x in extra(st, step, g % NB, g):
                    k.e(x)
        k.stamp(3)
        if self.stamp_ids:
            k.stamp(self.stamp_ids[1], "mid")

    def run(self, extra=None):
        self.core(True, extra)

    def run_compute(self, extra=None):
        self.core(False, extra)

    def mfma(self, st, step, buf, mi, ni, first):
        si, ko = self.stages[st][step // self.KS]
        a = self.acc[self.segs[si].acc][mi][ni]
        x, w = vr(self.X[buf][mi], 4), vr(self.W[buf][ni], 4)
        c = "0" if first else vr(a, 16)
        if (self.swapped[ni] if isinstance(self.swapped, (list, tuple)) else self.swapped):
            return f"v_mfma_f32_32x32x16_bf16 {vr(a, 16)}, {w}, {x}, {c}"
        return f"v_mfma_f32_32x32x16_bf16 {vr(a, 16)}, {x}, {w}, {c}"

    def prologue_dma(self, n=None):
        n = min(self.NS, len(self.stages)) if n is None else n
        self.npro = n
        self.k.stamp(2, "pro")
        for st in range(n):
            for o in self.dma_ops(st):
                self.emit_op(o)
        self.k.stamp(3, "pro")

    def prologue_gated(self, gate_fn, n=None):
        n = min(self.NS, len(self.stages)) if n is None else n
        self.npro = n
        parts = [self.dma_parts(st) for st in range(n)]
        for a, b in parts:
            for o in b:
                self.emit_op(o)
        gate_fn()
        for a, b in parts:
            for o in a:
                self.emit_op(o)

    def run_loader(self, after_prologue=None, gates=None, mid_hook=None):
        k = self.k
        nst = len(self.stages)
        gates = dict(gates or {})
        deferred = []
        def closed(st):
            return any(g <= st for g in gates)
        def issue(st):
            a, b = self.dma_parts(st)
            if closed(st):
                for o in b:
                    self.emit_op(o)
                deferred.extend(a)
            else:
                for o in a + b:
                    self.emit_op(o)
        npro = min(self.NS if 0 in gates else self.lpro, self.NS, nst)
        for st in range(npro):
            issue(st)
        if mid_hook:
            mid_hook()
        nxt = npro
        done = False
        for st in range(nst):
            if st in gates:
                gates.pop(st)()
                k.e("s_barrier")
                for o in deferred:
                    self.emit_op(o)
                deferred.clear()
            if after_prologue and not done and nxt >= nst:
                after_prologue()
                done = True
            k.wait_vm(("dma", id(self), st))
            k.e("s_barrier")
            while nxt < nst and nxt <= st - 1 + self.NS:
                issue(nxt)
                nxt += 1
```

```python
import os
from asmlib import *
from common import *
from gemm import *
from attn_ring import attn_role

GK = dict(wave_v=2, lane_v=1, s_row0=32, s_col0=33, s_wave=34, stmp=28, stmp2=76)
GKS = dict(GK, nloaders=4, lwave_v=3, s_lwave=82)
ACQ = bool(os.environ.get('ACQ'))
LF = '' if ACQ else ' sc1'
NB64 = int(os.environ.get('NB64', '4'))
SCR = 65536

def pf_dma(k, srd_, vl16, s_off, n):
    if 'p' in os.environ.get('GDBG', ''):
        return
    k.e(f"s_mov_b32 m0, {SCR}")
    k.e("s_nop 0")
    for i in range(n):
        k.vmem(f"buffer_load_dwordx4 v{vl16}, {sr(srd_, 4)}, s{s_off} offen lds", "pf")
        if i + 1 < n:
            k.e(f"s_add_u32 s{s_off}, s{s_off}, 1024")

def publish(k, srdF, s_off, vz, vone):
    e = k.e
    e("s_barrier")
    lab = k.newlabel("pub")
    e("s_cmp_lg_u32 s34, 0")
    e(f"s_cbranch_scc1 {lab}")
    e(f"v_mov_b32 v{vz}, 0")
    e(f"v_mov_b32 v{vone}, 1")
    e("s_mov_b64 exec, 1")
    e(f"buffer_store_dword v{vone}, v{vz}, {sr(srdF, 4)}, s{s_off} offen sc1")
    e("s_mov_b64 exec, -1")
    k.label(lab)

def wait_flags(k, srdF, s_off, n, va4, vf):
    e = k.e
    lab, loop, done = k.newlabel("wf"), k.newlabel("wfl"), k.newlabel("wfd")
    e("s_cmp_lg_u32 s34, 0")
    e(f"s_cbranch_scc1 {lab}")
    e(f"v_lshlrev_b32 v{va4}, 2, v1")
    e(f"s_mov_b32 s66, {hx((1 << n) - 1)}")
    e("s_mov_b32 s67, 0")
    e("s_mov_b32 s65, 0")
    e("s_mov_b64 exec, s[66:67]")
    k.label(loop)
    e(f"buffer_load_dword v{vf}, v{va4}, {sr(srdF, 4)}, s{s_off} offen sc1")
    e("s_waitcnt vmcnt(0)")
    e(f"v_cmp_ne_u32 vcc, 0, v{vf}")
    e("s_add_u32 s65, s65, 1")
    e("s_cmp_eq_u64 vcc, s[66:67]")
    e(f"s_cbranch_scc1 {done}")
    e("s_sleep 4")
    e("s_cmp_lt_u32 s65, 0x100000")
    e(f"s_cbranch_scc1 {loop}")
    k.label(done)
    e("s_mov_b64 exec, -1")
    if ACQ:
        e("buffer_inv sc1")
        e("s_waitcnt vmcnt(0)")
    k.label(lab)
    e("s_barrier")

def tile64_ids(k):
    e = k.e
    e("s_lshl_b32 s37, s35, 2")
    e("s_and_b32 s38, s36, 3")
    e("s_add_u32 s70, s37, s38")
    e("s_lshr_b32 s71, s36, 2")
    e("s_lshl_b32 s32, s70, 6")
    e("s_lshl_b32 s33, s71, 6")
    e("s_lshl_b32 s37, s38, 1")
    e("s_add_u32 s79, s37, s71")
    e("s_and_b32 s79, s79, 7")

def tile64_addr(k, vK, vT, vN, t1):
    e = k.e
    e("s_lshr_b32 s37, s34, 1")
    e("s_and_b32 s38, s34, 1")
    e("s_lshl_b32 s39, s37, 5")
    e("s_add_u32 s39, s39, s32")
    e(f"v_and_b32 v{vK}, 31, v1")
    e(f"v_add_u32 v{vK}, s39, v{vK}")
    e(f"v_lshlrev_b32 v{vT}, 10, v{vK}")
    e("s_lshl_b32 s81, s39, 5")
    e("s_lshl_b32 s39, s38, 5")
    e("s_add_u32 s39, s39, s33")
    e("s_lshl_b32 s80, s39, 12")
    e("s_add_u32 s80, s80, s81")
    e("s_add_u32 s81, s80, 0x10000")
    e("s_lshl_b32 s39, s39, 1")
    e(f"v_add_u32 v{vT}, s39, v{vT}")
    e(f"v_lshrrev_b32 v{t1}, 5, v1")
    e(f"v_lshl_add_u32 v{vN}, v{t1}, 3, v{vT}")
    e(f"v_lshlrev_b32 v{vT}, 4, v1")

def chain_role(k):
    e = k.e
    nm = k.name
    maxv = 0
    CP = os.environ.get('GPRIO', '2')
    LP = os.environ.get('LPRIO', '0')
    e(f"s_setprio {CP}")
    e("v_and_b32 v3, 3, v2")
    e("s_and_b32 s82, s34, 3")
    tile64_ids(k)
    e("s_waitcnt lgkmcnt(0)")
    k.stamp(1)
    srd(k, 4, P_WS, WS_H, MB2)
    srd(k, 8, P_W2, 0, 512 * 512 * 2)
    srd(k, 12, P_WS, WS_X1, MB2)
    srd(k, 16, P_X, 0, MB2)
    srd(k, 20, P_WS, WS_PST, 2048 * 128)
    srd(k, 24, P_WS, WS_PG, 2048 * 64)
    srd(k, 64, P_GATE, 0, 1024)
    srd(k, 72, P_WS, WS_FLG, 4096)
    va = VAlloc(4)
    g = Gemm(k, va, 64, 64, 2, 2, 4, 1, [Seg(512, 4, 1024, 8, 1024, rot=79, dynshift=True)], True, True, afrag=True, NBUF=NB64, **GKS)
    g.lpro = 4
    g.alloc()
    vT, vK = va.a(), va.a()
    tt = [va.a() for _ in range(7)]
    xr = va.a(8, 4)
    gr = va.a(8, 4)
    pk = [va.a(4, 4), va.a(4, 4)]
    e("s_cmp_ge_u32 s34, 4")
    e(f"s_cbranch_scc1 L_{nm}_A_ld")
    tile64_addr(k, vK, vT, tt[0], tt[1])
    e(f"v_lshlrev_b32 v{tt[2]}, 3, v{tt[1]}")
    for q in range(4):
        e(f"buffer_load_dwordx2 {vr(xr + 2 * q, 2)}, v{tt[0]}, s[16:19], 0 offen offset:{q * 16}")
    for q in range(4):
        e(f"buffer_load_dwordx2 {vr(gr + 2 * q, 2)}, v{tt[2]}, s[64:67], s39 offen offset:{q * 16}")
    g.setup_reads()
    e("s_lshl_b32 s83, s70, 1")
    e("s_add_u32 s83, s83, s37")
    g.run_compute()
    e("s_waitcnt vmcnt(0)")
    e("s_nop 7")
    x1_epilogue(k, g.acc[0][0][0], xr, gr, pk, tt, vT, 80, 12, 20, 24, 83, 71, 38, flag=" sc1")
    e("s_waitcnt vmcnt(0)")
    e(f"s_branch L_{nm}_A_join")
    k.label(f"L_{nm}_A_ld")
    k.vm = []
    g.setup_dma()
    def pfA():
        e(f"s_setprio {LP}")
        srd(k, 16, P_W3, 0, 512 * 1792 * 2)
        e("s_lshl_b32 s64, s36, 2")
        e("s_add_u32 s64, s64, s82")
        e("s_mul_i32 s64, s64, 14336")
        e(f"v_lshlrev_b32 v{tt[0]}, 4, v1")
        pf_dma(k, 16, tt[0], 64, 14)
    g.run_loader(pfA)
    k.label(f"L_{nm}_A_join")
    e("s_lshr_b32 s64, s70, 1")
    e("s_lshl_b32 s64, s64, 6")
    e("s_and_b32 s65, s70, 1")
    e("s_lshl_b32 s65, s65, 3")
    e("s_add_u32 s65, s65, s71")
    e("s_lshl_b32 s65, s65, 2")
    e("s_add_u32 s64, s64, s65")
    e("s_add_u32 s64, s64, 3072")
    publish(k, 72, 64, tt[0], tt[1])
    k.stamp(2, "mid")
    e(f"s_setprio {LP}")
    maxv = max(maxv, va.n)
    lds = g.lds_bytes
    srd(k, 24, P_W4, 0, 1792 * 512 * 2)
    e("s_lshl_b32 s3, s36, 3")
    e("s_add_u32 s3, s3, s34")
    e("s_mul_i32 s3, s3, 7168")
    e("v_lshlrev_b32 v3, 4, v1")
    if not os.environ.get("NOPF4"):
        lab = k.newlabel("pf4")
        e("s_cmp_eq_u32 s34, 0")
        e(f"s_cbranch_scc1 {lab}")
        pf_dma(k, 24, 3, 3, 8)
        k.label(lab)
    e("s_cmp_ge_u32 s36, 28")
    e(f"s_cbranch_scc1 L_{nm}_B_skip")
    k.vm = []
    BK = 32
    e("s_lshl_b32 s37, s35, 1")
    e("s_and_b32 s38, s36, 1")
    e("s_add_u32 s70, s37, s38")
    e("s_lshr_b32 s71, s36, 1")
    e("s_lshl_b32 s32, s70, 7")
    e("s_lshl_b32 s33, s71, 7")
    e("s_lshl_b32 s37, s38, 2")
    e("s_add_u32 s79, s37, s71")
    e("s_and_b32 s79, s79, 7")
    e("s_lshl_b32 s79, s79, 1")
    srd(k, 4, P_WS, WS_X1, MB2)
    srd(k, 8, P_W3, 0, 512 * 1792 * 2)
    srd(k, 12, P_WS, WS_H3, H3_BYTES)
    srd(k, 16, P_WS, WS_PST, 2048 * 128)
    srd(k, 20, P_WS, WS_CS3, 1792 * 4)
    va = VAlloc(4)
    g = Gemm(k, va, 128, 128, 4, 2, 4, 1, [Seg(512, 4, 1024, 8, 3584, rot=79)], True, True, BK=BK, afrag=True, **GK)
    g.alloc()
    g.segs[0].aflag = " sc1"
    csr = [va.a(16, 4), va.a(16, 4)]
    ps = va.a(16, 4)
    mean = [va.a(2, 2)]
    rstd = [va.a(2, 2)]
    vO = [va.a()]
    g.setup_dma()
    g.setup_reads()
    t0, t1, vP, vC = g.t[0:4]
    e("s_lshr_b32 s37, s34, 1")
    e("s_and_b32 s38, s34, 1")
    e("s_lshl_b32 s39, s37, 5")
    e("s_add_u32 s39, s39, s32")
    e(f"v_and_b32 v{t0}, 31, v1")
    e(f"v_lshlrev_b32 v{vP}, 4, v{t0}")
    e(f"v_add_u32 v{t0}, s39, v{t0}")
    e(f"v_lshrrev_b32 v{t1}, 5, v1")
    e(f"v_lshl_add_u32 v{vP}, v{t1}, 11, v{vP}")
    e("s_lshr_b32 s80, s39, 5")
    e("s_lshl_b32 s80, s80, 12")
    e("s_lshl_b32 s64, s38, 6")
    e("s_add_u32 s64, s64, s33")
    e("s_lshl_b32 s81, s64, 2")
    e(f"v_lshlrev_b32 v{vC}, 4, v{t1}")
    e(f"v_lshlrev_b32 v{vO[0]}, 4, v1")
    e("s_lshl_b32 s68, s64, 12")
    e("s_add_u32 s69, s68, 0x20000")
    e("s_lshl_b32 s83, s39, 5")
    BP = os.environ.get('BPRIO', CP)
    g.dma_prio = (LP, BP)
    pre = []
    for c in range(4):
        pre.append(f"buffer_load_dwordx4 {vr(ps + 4 * c, 4)}, v{vP}, s[16:19], s80 offen offset:{c * 512} sc1")
    for ni in range(2):
        for q in range(4):
            pre.append(f"buffer_load_dwordx4 {vr(csr[ni] + 4 * q, 4)}, v{vC}, s[20:23], s81 offen offset:{ni * 128 + q * 32}")
    def extra(st, step, buf, gs):
        if gs >= 8 and pre:
            k.vmem(pre.pop(0), "pre")
        return []
    def gateB():
        e("s_lshl_b32 s64, s70, 6")
        e("s_add_u32 s64, s64, 3072")
        e(f"v_lshlrev_b32 v{g.t[4]}, 2, v1")
        poll(k, 72, "s64", g.t[4], g.t[5], 16, 0, "ne", wave=0)
        e("s_barrier")
        k.stamp(4, "mid")
    g.prologue_gated(gateB)
    g.run(extra)
    assert not pre
    e("s_waitcnt vmcnt(0)")
    e(f"v_add_f32 v{mean[0]}, v{ps}, v{ps + 2}")
    e(f"v_add_f32 v{rstd[0]}, v{ps + 1}, v{ps + 3}")
    for c in range(2, 8):
        e(f"v_add_f32 v{mean[0]}, v{mean[0]}, v{ps + 2 * c}")
        e(f"v_add_f32 v{rstd[0]}, v{rstd[0]}, v{ps + 2 * c + 1}")
    e(f"v_mov_b32 v{mean[0] + 1}, v{mean[0]}")
    e(f"v_mov_b32 v{rstd[0] + 1}, v{rstd[0]}")
    e("s_nop 1")
    e(f"v_permlane32_swap_b32 v{mean[0]}, v{mean[0] + 1}")
    e(f"v_permlane32_swap_b32 v{rstd[0]}, v{rstd[0] + 1}")
    e("s_nop 1")
    e(f"v_add_f32 v{mean[0]}, v{mean[0]}, v{mean[0] + 1}")
    e(f"v_add_f32 v{rstd[0]}, v{rstd[0]}, v{rstd[0] + 1}")
    rstd_from_sums(k, mean[0], rstd[0])
    assert g.W[1][1] + 4 - g.X[0][0] == 24
    ln_gelu_store(k, g, va, csr, mean, rstd, vO[0], (83,), (68, 69), 65, 12, scratch=g.X[0][0], cls="!", scalar=bool(os.environ.get("SCGELU")))
    e("s_waitcnt vmcnt(0)")
    e("s_lshl_b32 s64, s70, 7")
    e("s_lshl_b32 s65, s71, 2")
    e("s_add_u32 s64, s64, s65")
    e(f"s_setprio {LP}")
    publish(k, 72, 64, g.t[4], g.t[5])
    e(f"s_branch L_{nm}_B_done")
    k.label(f"L_{nm}_B_skip")
    e(f"s_setprio {LP}")
    k.label(f"L_{nm}_B_done")
    e("v_and_b32 v3, 3, v2")
    k.stamp(8, "mid")
    maxv = max(maxv, va.n)
    lds = max(lds, g.lds_bytes)
    k.vm = []
    tile64_ids(k)
    e("s_mul_i32 s68, s79, 7")
    e("s_lshr_b32 s68, s68, 1")
    srd(k, 4, P_WS, WS_H3, H3_BYTES)
    srd(k, 8, P_W4, 0, 1792 * 512 * 2)
    srd(k, 12, P_OUT, 0, MB2)
    srd(k, 16, P_WS, WS_X1, MB2)
    srd(k, 20, P_WS, WS_O, MB2)
    srd(k, 24, P_WO, 0, 512 * 512 * 2)
    va = VAlloc(4)
    g = Gemm(k, va, 64, 64, 2, 2, 4, 1, [Seg(1792, 4, 3584, 8, 1024, rot=68, acc=0), Seg(512, 20, 1024, 24, 1024, rot=79, acc=1)],
             True, True, afrag=True, NBUF=NB64, **GKS)
    g.alloc()
    for sg_ in g.segs:
        sg_.aflag = " sc1"
    g.gate_stages = (0, 28)
    vT, vN, vK, t0, t1, vg, vg1 = [va.a() for _ in range(7)]
    xr = va.a(8, 4)
    pg = va.a(8, 4)
    pk = va.a(8, 4)
    e("s_cmp_ge_u32 s34, 4")
    e(f"s_cbranch_scc1 L_{nm}_C_ld")
    e(f"s_setprio {os.environ.get('CCPRIO', CP)}")
    srd(k, 64, P_WS, WS_PG, 2048 * 64)
    tile64_addr(k, vK, vT, vN, t1)
    e(f"v_and_b32 v{t0}, 31, v1")
    e(f"v_lshlrev_b32 v{t0}, 4, v{t0}")
    e(f"v_lshl_add_u32 v{t0}, v{t1}, 10, v{t0}")
    e("s_lshl_b32 s39, s70, 1")
    e("s_add_u32 s39, s39, s37")
    e("s_lshl_b32 s39, s39, 11")
    g.setup_reads()
    g.stamp_ids = (9, 3)
    b_ = g.acc[0][0][0]
    a_ = g.acc[1][0][0]
    def fold(st, step, buf, gs):
        if gs == 0:
            return [f"buffer_load_dwordx4 {vr(pg + 4 * c, 4)}, v{t0}, s[64:67], s39 offen offset:{c * 512} sc1" for c in range(2)] + \
                   [f"buffer_load_dwordx4 {vr(xr + 4 * hf, 4)}, v{vT}, s[16:19], s{80 + hf} offen sc1" for hf in range(2)]
        if gs == 48:
            return ["s_waitcnt vmcnt(0)"] + [f"v_add_f32 v{pg}, v{pg}, v{pg + i}" for i in range(1, 8)] + [
                f"v_mov_b32 v{vg}, v{pg}", "s_nop 1", f"v_permlane32_swap_b32 v{vg}, v{pg}", "s_nop 1",
                f"v_add_f32 v{vg}, v{vg}, v{pg}", f"v_mul_f32 v{vg}, {fl(-LOG2E)}, v{vg}", f"v_exp_f32 v{vg}, v{vg}", "s_nop 0",
                f"v_add_f32 v{vg}, 1.0, v{vg}", f"v_rcp_f32 v{vg}, v{vg}", "s_nop 0", f"v_sub_f32 v{vg1}, 1.0, v{vg}"]
        if gs == 28 * 4 - 4:
            return ["s_setprio 3"]
        if gs != 28 * 4 + 3:
            return []
        l = []
        for i2 in range(8):
            i = 2 * i2
            l += [f"v_lshlrev_b32 v{t0}, 16, v{xr + i2}", f"v_and_b32 v{t1}, 0xffff0000, v{xr + i2}",
                  f"v_add_f32 v{b_+i}, v{b_+i}, v{t0}", f"v_add_f32 v{b_+i+1}, v{b_+i+1}, v{t1}",
                  f"v_mul_f32 v{b_+i}, v{b_+i}, v{vg1}", f"v_mul_f32 v{b_+i+1}, v{b_+i+1}, v{vg1}"]
        return l
    g.run_compute(fold)
    e("s_nop 7")
    e("s_nop 3")
    for i2 in range(8):
        i = 2 * i2
        e(f"v_fmac_f32 v{b_+i}, v{a_+i}, v{vg}")
        e(f"v_fmac_f32 v{b_+i+1}, v{a_+i+1}, v{vg}")
        e(f"v_cvt_pk_bf16_f32 v{pk + i2}, v{b_+i}, v{b_+i+1}")
    for q in range(4):
        e(f"buffer_store_dwordx2 {vr(pk + 2 * q, 2)}, v{vN}, s[12:15], 0 offen offset:{q * 16}")
    e(f"s_branch L_{nm}_fin")
    k.label(f"L_{nm}_C_ld")
    k.vm = []
    g.setup_dma()
    e(f"v_lshlrev_b32 v{t0}, 2, v1")
    e("s_lshr_b32 s83, s70, 1")
    e("s_lshl_b32 s83, s83, 7")
    e("s_lshr_b32 s39, s70, 2")
    e("s_lshl_b32 s39, s39, 7")
    e("s_add_u32 s39, s39, 2048")
    def gateC():
        poll(k, 72, "s83", t0, t1, 14, 0, "ne")
        k.stamp(5, "mid")
    def gateD():
        k.stamp(6, "mid")
        poll(k, 72, "s39", t0, t1, 32, 0, "ne")
        e("s_setprio 3")
        k.stamp(7, "mid")
    g.run_loader(gates={0: gateC, 28: gateD})
    e(f"s_branch L_{nm}_fin")
    maxv = max(maxv, va.n)
    lds = max(lds, g.lds_bytes)
    assert lds <= SCR
    return maxv, SCR + 1024

def gen_mid():
    k = K("mid_kernel")
    e = k.e
    head(k, 512, fused=True)
    e("s_cmp_eq_u32 s33, 0")
    e(f"s_cbranch_scc1 L_mid_attn")
    if os.environ.get("NOGEMM"):
        e("s_branch L_mid_kernel_end")
    n1, l1 = chain_role(k)
    k.label("L_mid_attn")
    k.vm = []
    va = VAlloc(4)
    l2 = attn_role(k, va, "mid_a")
    tail(k)
    return k, max(n1, va.n), max(l1, l2)

def gen_g5():
    k = K("g5_kernel")
    e = k.e
    head(k, 256)
    tile64_ids(k)
    e("s_lshr_b32 s79, s79, 1")
    e("s_waitcnt lgkmcnt(0)")
    k.stamp(1)
    srd(k, 4, P_WS, WS_O, MB2)
    srd(k, 8, P_WO, 0, 512 * 512 * 2)
    srd(k, 12, P_OUT, 0, MB2)
    srd(k, 16, P_WS, WS_BB, MB2)
    srd(k, 64, P_WS, WS_PG, 2048 * 64)
    va = VAlloc(4)
    g = Gemm(k, va, 64, 64, 2, 2, 4, 2, [Seg(512, 4, 1024, 8, 1024, rot=79)], True, True, afrag=True, NBUF=NB64, **GK)
    g.alloc()
    g.setup_dma()
    g.prologue_dma(4)
    vT, vN, vK, t0, t1, vg, vg1 = [va.a() for _ in range(7)]
    xr = va.a(8, 4)
    pg = va.a(8, 4)
    pk = va.a(8, 4)
    tile64_addr(k, vK, vT, vN, t1)
    e(f"v_and_b32 v{t0}, 31, v1")
    e(f"v_lshlrev_b32 v{t0}, 4, v{t0}")
    e(f"v_lshl_add_u32 v{t0}, v{t1}, 10, v{t0}")
    e("s_lshl_b32 s39, s70, 1")
    e("s_add_u32 s39, s39, s37")
    e("s_lshl_b32 s39, s39, 11")
    for c in range(2):
        k.vmem(f"buffer_load_dwordx4 {vr(pg + 4 * c, 4)}, v{t0}, s[64:67], s39 offen offset:{c * 512}", "epi")
    for hf in range(2):
        k.vmem(f"buffer_load_dwordx4 {vr(xr + 4 * hf, 4)}, v{vT}, s[16:19], s{80 + hf} offen", "epi")
    g.setup_reads()
    g.run()
    e("s_waitcnt vmcnt(0)")
    for i in range(1, 8):
        e(f"v_add_f32 v{pg}, v{pg}, v{pg + i}")
    e(f"v_mov_b32 v{vg}, v{pg}")
    e("s_nop 1")
    e(f"v_permlane32_swap_b32 v{vg}, v{pg}")
    e("s_nop 1")
    e(f"v_add_f32 v{vg}, v{vg}, v{pg}")
    e(f"v_mul_f32 v{vg}, {fl(-LOG2E)}, v{vg}")
    e(f"v_exp_f32 v{vg}, v{vg}")
    e("s_nop 0")
    e(f"v_add_f32 v{vg}, 1.0, v{vg}")
    e(f"v_rcp_f32 v{vg}, v{vg}")
    e("s_nop 0")
    e(f"v_sub_f32 v{vg1}, 1.0, v{vg}")
    a = g.acc[0][0][0]
    for i2 in range(8):
        i = 2 * i2
        e(f"v_lshlrev_b32 v{t0}, 16, v{xr + i2}")
        e(f"v_and_b32 v{t1}, 0xffff0000, v{xr + i2}")
        e(f"v_mul_f32 v{t0}, v{t0}, v{vg1}")
        e(f"v_mul_f32 v{t1}, v{t1}, v{vg1}")
        e(f"v_fmac_f32 v{t0}, v{a+i}, v{vg}")
        e(f"v_fmac_f32 v{t1}, v{a+i+1}, v{vg}")
        e(f"v_cvt_pk_bf16_f32 v{pk + i2}, v{t0}, v{t1}")
    for q in range(4):
        e(f"buffer_store_dwordx2 {vr(pk + 2 * q, 2)}, v{vN}, s[12:15], 0 offen offset:{q * 16}")
    tail(k)
    return k, va.n, g.lds_bytes
```
